```python
import torch

def _softmax(x, axis=-1):
    return torch.softmax(x, dim=axis)
def _gelu(x):
    return torch.nn.functional.gelu(x, approximate="tanh")
def _silu(x):
    return torch.nn.functional.silu(x)
def _sigmoid(x):
    return torch.sigmoid(x)
def _layernorm(x, axis=-1, eps=1e-5):
    m = x.mean(dim=axis, keepdim=True)
    v = x.var(dim=axis, keepdim=True, unbiased=False)
    return (x - m) / torch.sqrt(v + eps)
def _scatter_add(tgt, idx, src, axis=0):
    return tgt.clone().index_add_(axis, idx, src)
def _segment_sum(src, seg, n):
    out = torch.zeros((n,) + src.shape[1:], dtype=src.dtype)
    return out.index_add_(0, seg, src)
def _pad(x, pw):
    flat = tuple(v for pair in reversed(pw) for v in pair)
    return torch.nn.functional.pad(x, flat)

kernel_name = 'gated_mix__linear_attn_block__mixer_token_mlp__prompt'

def setup_inputs():

    _w = (lambda a: (lambda t: t.to(torch.bfloat16) if t.is_floating_point() else t)(torch.as_tensor(a)))
    def _A_setup():
        B, S, D = 1, 2048, 512
        return {
            "x": _w((lambda *s: torch.randn(*s, dtype=torch.bfloat16) * 0.05)(B, S, D)),
            "wqkv": _w((lambda *s: torch.randn(*s, dtype=torch.bfloat16) * 0.4)(D, 3 * D)),
            "wo": _w((lambda *s: torch.randn(*s, dtype=torch.bfloat16) * 0.05)(D, D)),
        }
    _A_in = _A_setup()

    def _B_setup():
        B, S, D, F = 1, 2048, 512, 1792
        return {
            "x": _w((lambda *s: torch.randn(*s, dtype=torch.bfloat16) * 0.05)(B, S, D)),
            "w1": _w((lambda *s: torch.randn(*s, dtype=torch.bfloat16) * 0.4)(S, F) * (S ** -0.5)),
            "b1": _w((lambda *s: torch.randn(*s, dtype=torch.bfloat16) * 3.2)(F) * 0.02),
            "w2": _w((lambda *s: torch.randn(*s, dtype=torch.bfloat16) * 0.05)(F, S) * (F ** -0.5)),
            "b2": _w((lambda *s: torch.randn(*s, dtype=torch.bfloat16) * 0.1)(S) * 0.02),
        }
    _B_in = _B_setup()

    return {
        "A_x": _A_in["x"],
        "A_wqkv": _A_in["wqkv"],
        "A_wo": _A_in["wo"],
        "B_x": _B_in["x"],
        "B_w1": _B_in["w1"],
        "B_b1": _B_in["b1"],
        "B_w2": _B_in["w2"],
        "B_b2": _B_in["b2"],
        "gate_w": _w((lambda *s: torch.randn(*s, dtype=torch.bfloat16) * 0.05)(512) * 16.0),
    }

def reference(A_x, A_wqkv, A_wo, B_x, B_w1, B_b1, B_w2, B_b2, gate_w):
    def _A_ref(x, wqkv, wo):
        B, S, D = x.shape
        H = 32; Dh = D // H
        qkv = (lambda x, *d: x.permute(*d))((x @ wqkv).reshape(B, S, 3, H, Dh), 2, 0, 3, 1, 4)
        q, k, v = qkv[0], qkv[1], qkv[2]
        phi = lambda t: torch.where(t > 0, t + 1, torch.exp(t)) + 1e-6
        pq, pk = phi(q), phi(k)
        kv = torch.einsum("bhsd,bhse->bhde", pk, v)
        z = torch.einsum("bhsd->bhd", pk)
        num = torch.einsum("bhqd,bhde->bhqe", pq, kv)
        den = torch.einsum("bhqd,bhd->bhq", pq, z)[..., None] + 1e-6
        o = num / den
        return (lambda x, *d: x.permute(*d))(o, 0, 2, 1, 3).reshape(B, S, D) @ wo

    def _B_ref(x, w1, b1, w2, b2):
        B, S, D = x.shape
        h = _layernorm(x, axis=-1)
        u = torch.einsum("bsd,sf->bdf", h, w1) + b1
        u = _gelu(u)
        y = torch.einsum("bdf,fs->bds", u, w2) + b2
        return (lambda x, *d: x.permute(*d))(y, 0, 2, 1)

    x = A_x
    g = _sigmoid((x * gate_w).sum(-1, keepdims=True))
    a = _A_ref(x, A_wqkv, A_wo)
    b = _B_ref(x, B_w1, B_b1, B_w2, B_b2)
    return g * a + (1 - g) * b
```

```python
import re
import struct

REG_RE = re.compile(r'^(-?)(?:abs\()?([vas])(?:(\d+)|\[(\d+):(\d+)\])\)?$')
TRANS = ('v_exp_f32', 'v_rcp_f32', 'v_rsq_f32', 'v_log_f32', 'v_sqrt_f32', 'v_sin_f32', 'v_cos_f32')


def f32(x):
    return '0x%08x' % struct.unpack('<I', struct.pack('<f', x))[0]


def regs_of(op):
    op = op.strip()
    if op in ('vcc', 'vcc_lo', 'vcc_hi'):
        return {('vcc', 0)}
    if op in ('exec', 'exec_lo', 'exec_hi'):
        return {('exec', 0)}
    if op == 'm0':
        return {('m0', 0)}
    m = REG_RE.match(op)
    if not m:
        return set()
    k = m.group(2)
    if m.group(3) is not None:
        return {(k, int(m.group(3)))}
    return {(k, i) for i in range(int(m.group(4)), int(m.group(5)) + 1)}


def split_ops(s):
    out, depth, cur = [], 0, ''
    for ch in s:
        if ch in '[(':
            depth += 1
        if ch in '])':
            depth -= 1
        if ch == ',' and depth == 0:
            out.append(cur.strip())
            cur = ''
        else:
            cur += ch
    if cur.strip():
        out.append(cur.strip())
    return out


class Ins:
    def __init__(self, text):
        self.text = text
        t = text.split(';')[0].strip()
        self.label = t.endswith(':')
        self.directive = t.startswith('.')
        self.kind = 'other'
        self.w = set()
        self.r = set()
        self.srcc = set()
        self.ab = set()
        self.passes = 0
        self.dpp = False
        self.states = 1
        self.store_data = set()
        self.mn = ''
        if self.label or self.directive or not t:
            self.states = 0
            return
        parts = t.split(None, 1)
        mn = parts[0]
        self.mn = mn
        rest = parts[1] if len(parts) > 1 else ''
        ops = split_ops(rest)
        mods = ''
        if ops:
            last = ops[-1].split(None, 1)
            ops[-1] = last[0]
            mods = last[1] if len(last) > 1 else ''
        self.mods = mods
        R = [regs_of(o) for o in ops]
        allr = lambda xs: set().union(*xs) if xs else set()
        if mn.startswith('v_mfma'):
            self.kind = 'mfma'
            self.w = R[0]
            self.ab = R[1] | R[2]
            self.srcc = R[3]
            self.r = self.ab | self.srcc
            self.passes = 8 if '32x32x16' in mn else 4
        elif mn.startswith('v_'):
            self.kind = 'valu'
            if 'quad_perm' in mods or 'row_' in mods or 'wave_' in mods or mn.endswith('_dpp'):
                self.dpp = True
            if mn.startswith('v_permlane'):
                self.w = R[0] | R[1]
                self.r = R[0] | R[1]
            elif mn.startswith('v_cmp'):
                self.w = R[0]
                self.r = allr(R[1:])
            elif '_co_' in mn:
                self.w = R[0] | R[1]
                self.r = allr(R[2:])
            else:
                self.w = R[0]
                self.r = allr(R[1:])
                if mn.startswith(('v_fmac', 'v_dot2c', 'v_writelane')) or self.dpp:
                    self.r |= R[0]
        elif mn.startswith('ds_'):
            self.kind = 'ds'
            if mn.startswith(('ds_read', 'ds_bpermute', 'ds_permute', 'ds_swizzle')):
                self.w = R[0]
                self.r = allr(R[1:])
            else:
                self.r = allr(R)
            if 'addtid' in mn:
                self.r |= {('m0', 0)}
        elif mn.startswith(('buffer_', 'global_')):
            self.kind = 'vmem'
            lds = bool(re.search(r'\blds\b', mods)) or '_lds_' in mn
            self.lds_dma = lds
            if mn in ('buffer_inv', 'buffer_wbl2'):
                pass
            elif 'load' in mn and not lds:
                self.w = R[0]
                self.r = allr(R[1:])
            elif lds:
                self.r = allr(R) | {('m0', 0)}
            else:
                self.r = allr(R)
                if 'atomic' in mn and re.search(r'\bsc0\b', mods):
                    self.w = R[0]
                if mn.startswith('buffer_store') and ('x4' in mn or 'x3' in mn):
                    self.store_data = R[0]
                if mn.startswith('global_store') and ('x4' in mn or 'x3' in mn):
                    self.store_data = R[1]
        elif mn.startswith('s_'):
            self.kind = 'salu'
            if mn == 's_nop':
                self.states = int(ops[0], 0) + 1
            elif mn.startswith(('s_waitcnt', 's_barrier', 's_branch', 's_cbranch', 's_endpgm', 's_sleep',
                                's_setprio', 's_cmp', 's_bitcmp')):
                self.r = allr(R)
            else:
                self.w = R[0] if R else set()
                self.r = allr(R[1:])
                if 'saveexec' in mn:
                    self.w |= {('exec', 0)}


def need(p, c):
    n = 0
    vw = {x for x in p.w if x[0] in 'va' and x[0] != 'vcc'}
    vw = {x for x in p.w if x[0] in ('v', 'a')}
    sw = {x for x in p.w if x[0] in ('s', 'vcc')}
    if p.kind == 'valu':
        if c.kind == 'mfma' and vw & c.r:
            n = max(n, 2)
        if sw:
            if c.kind == 'vmem' and sw & c.r:
                n = max(n, 5)
            if c.kind in ('valu', 'mfma') and sw & c.r:
                n = max(n, 4 if c.mn.startswith(('v_readlane', 'v_writelane')) else 2)
            if c.kind == 'salu' and sw & c.r:
                n = max(n, 1)
        if p.mn.startswith(TRANS) and vw & c.r:
            n = max(n, 1)
        if c.kind == 'valu' and vw & c.r:
            if c.dpp or c.mn.startswith('v_permlane'):
                n = max(n, 2)
            if c.mn.startswith(('v_readlane', 'v_readfirstlane')):
                n = max(n, 1)
        if ('exec', 0) in p.w:
            n = max(n, 5)
    if p.kind == 'mfma':
        big = {4: 8, 8: 12}[p.passes]
        if c.kind == 'mfma':
            if p.w & c.ab:
                n = max(n, big)
            if p.w & c.srcc and not (p.w == c.srcc and p.passes == c.passes):
                n = max(n, p.passes + 2)
            if p.w & c.w and not (p.w == c.w and p.w == c.srcc):
                n = max(n, big)
        elif c.kind in ('valu', 'vmem', 'ds'):
            if p.w & (c.r | c.w):
                n = max(n, big)
            if p.srcc & c.w:
                n = max(n, p.passes - 1)
    if p.kind == 'salu' and ('m0', 0) in p.w and ('m0', 0) in c.r and c.kind != 'salu':
        n = max(n, 1)
    if p.store_data and p.store_data & c.w:
        n = max(n, 2)
    return n


class Asm:
    def __init__(self):
        self.ins = []
        self.vm = []
        self.lg = []
        self.smem = False

    def raw(self, text):
        self.ins.append(Ins(text))

    def __call__(self, text, tag=None):
        i = Ins(text)
        dist = 0
        req = 0
        for p in reversed(self.ins):
            if dist >= 24:
                break
            k = need(p, i) - dist
            if k > req:
                req = k
            dist += p.states
        while req > 0:
            k = min(req, 16)
            self.ins.append(Ins('s_nop %d' % (k - 1)))
            req -= k
        self.ins.append(i)
        if i.kind == 'vmem':
            self.vm.append(tag)
            assert len(self.vm) <= 63, 'vmcnt overflow'
        elif i.kind == 'ds':
            self.lg.append(tag)
        elif i.mn.startswith(('s_load', 's_memtime', 's_memrealtime', 's_buffer_load')):
            self.smem = True

    def label(self, name):
        self.ins.append(Ins(name + ':'))

    def comment(self, text):
        self.ins.append(Ins('; ' + text))

    @staticmethod
    def _count(q, tags):
        idx = -1
        for n, t in enumerate(q):
            if t in tags:
                idx = n
        return idx

    def wait(self, vm=(), lg=(), force=False):
        parts = []
        if isinstance(vm, (str, tuple)) and not isinstance(vm, list):
            vm = [vm] if vm != () else []
        if isinstance(lg, (str, tuple)) and not isinstance(lg, list):
            lg = [lg] if lg != () else []
        if vm:
            idx = self._count(self.vm, vm)
            if idx >= 0:
                n = len(self.vm) - 1 - idx
                parts.append('vmcnt(%d)' % n)
                self.vm = self.vm[idx + 1:]
        if lg:
            idx = self._count(self.lg, lg)
            if idx >= 0:
                assert not self.smem
                n = len(self.lg) - 1 - idx
                if n > 15:
                    n = 15
                    idx = len(self.lg) - 1 - 15
                    raise AssertionError('lgkmcnt overflow')
                parts.append('lgkmcnt(%d)' % n)
                self.lg = self.lg[idx + 1:]
        if parts:
            self('s_waitcnt ' + ' '.join(parts))

    def wait_all(self, vm=True, lg=True):
        parts = []
        if vm:
            parts.append('vmcnt(0)')
            self.vm = []
        if lg:
            parts.append('lgkmcnt(0)')
            self.lg = []
            self.smem = False
        self('s_waitcnt ' + ' '.join(parts))

    def reset_counters(self):
        self.vm = []
        self.lg = []
        self.smem = False

    def text(self):
        out = []
        for i in self.ins:
            if i.label or i.directive:
                out.append(i.text)
            else:
                out.append('    ' + i.text)
        return '\n'.join(out) + '\n'


def v(n, k=1):
    return 'v%d' % n if k == 1 else 'v[%d:%d]' % (n, n + k - 1)


def a(n, k=1):
    return 'a%d' % n if k == 1 else 'a[%d:%d]' % (n, n + k - 1)


def s(n, k=1):
    return 's%d' % n if k == 1 else 's[%d:%d]' % (n, n + k - 1)
```

```python
import sys
import math
from asmlib import Asm, f32, v, a, s

NAME = 'gated_mix__linear_attn_block__mixer_token_mlp__prompt'
REF = 'cdna_kernels/%s.s.ref' % NAME

WS_HT = 0x000000
WS_PQ = 0x200000
WS_PP = 0x400000
WS_UM = 0x600000
WS_KVP = 0x880000
WS_ZP = 0x900000
WS_G = 0x910000
WS_SIZE = 0x1000000
UM_TILE = 288 * 1024

LOG2E = 1.4426950408889634

CFG = dict(D=5, NCH=4)


def srd(A, base, size):
    A('s_mov_b32 %s, 0x%x' % (s(base + 2), size))
    A('s_mov_b32 %s, 0x20000' % s(base + 3))


def phi(A, regs, tmp):
    for r, t in zip(regs, tmp):
        A('v_mul_f32 %s, %s, %s' % (v(t), f32(LOG2E), v(r)))
    for r, t in zip(regs, tmp):
        A('v_exp_f32_e64 %s, %s clamp' % (v(t), v(t)))
        A('v_max_f32 %s, 0, %s' % (v(r), v(r)))
    for r, t in zip(regs, tmp):
        A('v_add_f32 %s, %s, %s' % (v(r), v(r), v(t)))
    for r, t in zip(regs, tmp):
        A('v_add_f32 %s, %s, %s' % (v(r), f32(1e-6), v(r)))


def allreduce(A, regs, tmps):
    for mod in ('quad_perm:[1,0,3,2]', 'quad_perm:[2,3,0,1]', 'row_half_mirror', 'row_mirror'):
        for r in regs:
            A('v_add_f32_dpp %s, %s, %s %s row_mask:0xf bank_mask:0xf' % (v(r), v(r), v(r), mod))
    cross_rows(A, regs, tmps)


def cross_rows(A, regs, tmps):
    for ins in ('v_permlane16_swap_b32', 'v_permlane32_swap_b32'):
        for r, t in zip(regs, tmps):
            A('v_mov_b32 %s, %s' % (v(t), v(r)))
        for r, t in zip(regs, tmps):
            A('%s %s, %s' % (ins, v(r), v(t)))
        for r, t in zip(regs, tmps):
            A('v_add_f32 %s, %s, %s' % (v(r), v(r), v(t)))


def unpack(A, src, n, dst):
    for i in range(n):
        A('v_lshlrev_b32 %s, 16, %s' % (v(dst + 2 * i), v(src + i)))
        A('v_and_b32 %s, 0xffff0000, %s' % (v(dst + 2 * i + 1), v(src + i)))


def header(A, name):
    A.raw('.globl %s' % name)
    A.raw('.p2align 8')
    A.raw('.type %s,@function' % name)
    A.label(name)
    A.reset_counters()


def gen_k1(A):
    NCH = CFG['NCH']
    KPC = 16 // NCH
    header(A, 'k1_kernel')
    LDS_LN = 98304
    LN_STRIDE = 1088
    LDS_KV = LDS_LN + 8 * LN_STRIDE
    SX, SW, SG, SWS = 12, 16, 20, 24
    A('s_cmp_ge_u32 s2, 256')
    A('s_cbranch_scc1 k1_end')
    A('s_load_dwordx2 s[12:13], s[0:1], 0')
    A('s_load_dwordx2 s[16:17], s[0:1], 8')
    A('s_load_dwordx2 s[20:21], s[0:1], 64')
    A('s_load_dwordx2 s[24:25], s[0:1], 88')
    A('v_lshrrev_b32 v1, 6, v0')
    A('v_and_b32 v2, 63, v0')
    A('v_readfirstlane_b32 s28, v1')
    srd(A, SX, 2048 * 512 * 2)
    srd(A, SW, 512 * 1536 * 2)
    srd(A, SG, 1024)
    srd(A, SWS, WS_SIZE)
    A('s_and_b32 s3, s2, 7')
    A('s_lshr_b32 s4, s2, 3')
    A('s_lshr_b32 s5, s3, 1')
    A('s_lshl_b32 s5, s5, 2')
    A('s_and_b32 s6, s4, 3')
    A('s_add_u32 s30, s5, s6')
    A('s_and_b32 s5, s3, 1')
    A('s_lshl_b32 s5, s5, 3')
    A('s_lshr_b32 s6, s4, 2')
    A('s_add_u32 s31, s5, s6')
    A('v_and_b32 v3, 15, v2')
    A('v_lshrrev_b32 v4, 4, v2')
    A('v_lshlrev_b32 v5, 4, v2')
    A('v_lshlrev_b32 v6, 10, v3')
    A('v_lshl_add_u32 v6, v4, 4, v6')
    A('v_add_u32 v7, 0x4000, v6')
    A('v_lshrrev_b32 v9, 2, v2')
    A('v_mul_u32_u24 v8, 3072, v9')
    A('v_lshrrev_b32 v9, 5, v2')
    A('v_lshlrev_b32 v9, 1, v9')
    A('v_and_b32 v10, 3, v2')
    A('v_xor_b32 v9, v9, v10')
    A('v_lshl_add_u32 v8, v9, 4, v8')
    A('s_lshl_b32 s5, s30, 7')
    A('s_lshl_b32 s6, s31, 3')
    A('s_add_u32 s33, s5, s6')
    A('s_lshl_b32 s6, s28, 1')
    A('s_add_u32 s32, s33, s6')
    A('s_lshl_b32 s32, s32, 10')
    A('s_lshl_b32 s6, s28, 5')
    A('s_add_u32 s35, s5, s6')
    A('s_lshl_b32 s34, s35, 10')
    RPW = 512 // NCH // 4
    NJ = RPW // 16
    A('s_mul_i32 s36, s28, %d' % (RPW * 3072))
    A('s_lshl_b32 s6, s31, 6')
    A('s_add_u32 s36, s36, s6')
    A('s_mul_i32 s37, s28, %d' % (NJ * 3072))
    A.wait_all(vm=False)
    LNA, LNB, LNG = 16, 20, 24
    A('buffer_load_dwordx4 %s, v5, s[12:15], s32 offen' % v(LNA, 4), 'ln')
    A('buffer_load_dwordx4 %s, v5, s[12:15], s32 offen offset:1024' % v(LNB, 4), 'ln')
    A('buffer_load_dwordx4 %s, v5, s[20:23], 0 offen' % v(LNG, 4), 'ln')
    XB = 0
    for c in range(NCH):
        for j in range(NJ):
            A('s_add_u32 m0, s37, %d' % ((c * 4 * NJ + j) * 3072))
            A('s_add_u32 s38, s36, %d' % ((c * 4 * RPW + 16 * j) * 3072))
            for t in range(3):
                A('buffer_load_dwordx4 v8, s[16:19], s38 offen offset:%d lds' % (1024 * t), ('ch', c))
        for ks in range(c * KPC, (c + 1) * KPC):
            for tb in range(2):
                A('buffer_load_dwordx4 %s, %s, s[12:15], s34 offen offset:%d'
                  % (a(XB + (ks * 2 + tb) * 4, 4), v(6 + tb), ks * 64), ('ch', c))
    A('v_lshrrev_b32 v9, 1, v4')
    A('v_mul_u32_u24 v10, 3072, v9')
    A('v_and_b32 v9, 1, v4')
    A('v_lshl_add_u32 v10, v9, 9, v10')
    A('v_lshl_add_u32 v10, v9, 5, v10')
    A('v_lshrrev_b32 v14, 2, v3')
    A('v_lshl_add_u32 v10, v14, 6, v10')
    A('v_and_b32 v15, 3, v3')
    A('v_lshl_add_u32 v10, v15, 3, v10')
    A('v_xor_b32 v11, 32, v10')
    A('v_add_u32 v12, 49152, v10')
    A('v_add_u32 v13, 49152, v11')
    A.wait(vm='ln')
    XA, XBb, GW = 32, 40, 48
    unpack(A, LNA, 4, XA)
    unpack(A, LNB, 4, XBb)
    unpack(A, LNG, 4, GW)
    SA, SB, DA, DB = 56, 57, 58, 59
    A('v_add_f32 %s, %s, %s' % (v(SA), v(XA), v(XA + 1)))
    A('v_add_f32 %s, %s, %s' % (v(SB), v(XBb), v(XBb + 1)))
    A('v_mul_f32 %s, %s, %s' % (v(DA), v(XA), v(GW)))
    A('v_mul_f32 %s, %s, %s' % (v(DB), v(XBb), v(GW)))
    for i in range(1, 8):
        if i >= 2:
            A('v_add_f32 %s, %s, %s' % (v(SA), v(SA), v(XA + i)))
            A('v_add_f32 %s, %s, %s' % (v(SB), v(SB), v(XBb + i)))
        A('v_fmac_f32 %s, %s, %s' % (v(DA), v(XA + i), v(GW + i)))
        A('v_fmac_f32 %s, %s, %s' % (v(DB), v(XBb + i), v(GW + i)))
    allreduce(A, [SA, SB, DA, DB], [60, 61, 62, 63])
    A('v_mul_f32 %s, %s, %s' % (v(SA), f32(1 / 512), v(SA)))
    A('v_mul_f32 %s, %s, %s' % (v(SB), f32(1 / 512), v(SB)))
    for i in range(8):
        A('v_sub_f32 %s, %s, %s' % (v(XA + i), v(XA + i), v(SA)))
        A('v_sub_f32 %s, %s, %s' % (v(XBb + i), v(XBb + i), v(SB)))
    A('v_mul_f32 %s, %s, %s' % (v(SA), v(XA), v(XA)))
    A('v_mul_f32 %s, %s, %s' % (v(SB), v(XBb), v(XBb)))
    for i in range(1, 8):
        A('v_fmac_f32 %s, %s, %s' % (v(SA), v(XA + i), v(XA + i)))
        A('v_fmac_f32 %s, %s, %s' % (v(SB), v(XBb + i), v(XBb + i)))
    allreduce(A, [SA, SB], [60, 61])
    A('v_mov_b32 v60, %s' % f32(1e-5))
    A('v_fmamk_f32 %s, %s, %s, v60' % (v(SA), v(SA), f32(1 / 512)))
    A('v_fmamk_f32 %s, %s, %s, v60' % (v(SB), v(SB), f32(1 / 512)))
    A('v_rsq_f32 %s, %s' % (v(SA), v(SA)))
    A('v_rsq_f32 %s, %s' % (v(SB), v(SB)))
    A('v_cmp_eq_u32 vcc, 0, v2')
    A('v_lshlrev_b32 v61, 2, v2')
    A('v_cndmask_b32 %s, %s, %s, vcc' % (v(DA), v(DB), v(DA)))
    A('v_mul_f32 %s, %s, %s' % (v(DA), f32(-LOG2E), v(DA)))
    A('v_exp_f32 %s, %s' % (v(DA), v(DA)))
    for i in range(8):
        A('v_mul_f32 %s, %s, %s' % (v(XA + i), v(XA + i), v(SA)))
        A('v_mul_f32 %s, %s, %s' % (v(XBb + i), v(XBb + i), v(SB)))
    A('v_add_f32 %s, 1.0, %s' % (v(DA), v(DA)))
    A('v_rcp_f32 %s, %s' % (v(DA), v(DA)))
    for i in range(4):
        A('v_cvt_pk_bf16_f32 %s, %s, %s' % (v(LNA + i), v(XA + 2 * i), v(XA + 2 * i + 1)))
        A('v_cvt_pk_bf16_f32 %s, %s, %s' % (v(LNB + i), v(XBb + 2 * i), v(XBb + 2 * i + 1)))
    A('s_mul_i32 s5, s28, %d' % (2 * LN_STRIDE))
    A('s_add_u32 s5, s5, %d' % LDS_LN)
    A('v_add_u32 v60, s5, v5')
    A('ds_write_b128 v60, %s' % v(LNA, 4), 'lnw')
    A('ds_write_b128 v60, %s offset:%d' % (v(LNB, 4), LN_STRIDE), 'lnw')
    A('s_lshr_b32 s5, s32, 8')
    A('s_add_u32 s5, s5, %d' % WS_G)
    A('s_mov_b64 exec, 3')
    A('buffer_store_dword %s, v61, s[24:27], s5 offen' % v(DA), 'st')
    A('s_mov_b64 exec, -1')
    A('v_mul_u32_u24 v62, %d, v14' % LN_STRIDE)
    A('v_lshl_add_u32 v62, v4, 5, v62')
    A('v_lshl_add_u32 v62, v15, 3, v62')
    A('s_lshl_b32 s5, s28, 8')
    A('s_add_u32 s5, s5, %d' % LDS_LN)
    A('v_add_u32 v62, s5, v62')
    WF = [64, 88]
    ACC = 112
    HTR = 16

    def reads(ks):
        out = []
        for t in range(3):
            for j in range(2):
                for sec in range(2):
                    base = 10 + j + (2 if ks >= 8 else 0)
                    off = (ks % 8) * 6144 + t * 1024 + sec * 256
                    out.append(('ds_read_b64_tr_b16 %s, %s offset:%d'
                                % (v(WF[ks % 2] + (t * 2 + j) * 4 + sec * 2, 2), v(base), off), ('wf', ks, t * 2 + j)))
        return out

    for ks in range(16):
        if ks % KPC == 0:
            A.wait(vm=[('ch', ks // KPC)], lg=['lnw'])
            A('s_barrier')
            for ins, tag in reads(ks):
                A(ins, tag)
        nxt = reads(ks + 1) if (ks + 1) % KPC != 0 else []
        for cb in range(6):
            A.wait(lg=[('wf', ks, cb)])
            for tb in range(2):
                acc = v(ACC + (cb * 2 + tb) * 4, 4)
                wf = v(WF[ks % 2] + cb * 4, 4)
                xf = a(XB + (ks * 2 + tb) * 4, 4)
                c_in = '0' if ks == 0 else acc
                if cb < 2:
                    A('v_mfma_f32_16x16x32_bf16 %s, %s, %s, %s' % (acc, wf, xf, c_in))
                else:
                    A('v_mfma_f32_16x16x32_bf16 %s, %s, %s, %s' % (acc, xf, wf, c_in))
                if nxt:
                    ins, tag = nxt.pop(0)
                    A(ins, tag)
        if ks == KPC - 1:
            for rnd in range(2):
                for sec in range(2):
                    A('ds_read_b64_tr_b16 %s, v62 offset:%d'
                      % (v(HTR + rnd * 4 + sec * 2, 2), rnd * 128 + sec * 4 * LN_STRIDE), 'htr')
            A('s_lshl_b32 s5, s28, 19')
            A('s_lshl_b32 s6, s33, 7')
            A('s_add_u32 s5, s5, s6')
            if WS_HT:
                A('s_add_u32 s5, s5, %d' % WS_HT)
            A('s_add_u32 s6, s5, 0x40000')
            A.wait(lg='htr')
            A('buffer_store_dwordx4 %s, v5, s[24:27], s5 offen' % v(HTR, 4), 'st')
            A('buffer_store_dwordx4 %s, v5, s[24:27], s6 offen' % v(HTR + 4, 4), 'st')
    def accr(cb, tb):
        return [ACC + (cb * 2 + tb) * 4 + r for r in range(4)]

    kregs = accr(2, 0) + accr(2, 1) + accr(3, 0) + accr(3, 1)
    phi(A, kregs, list(range(64, 80)))
    PK, VV, ONE = 80, 88, 96
    for j in range(2):
        rr = accr(2 + j, 0) + accr(2 + j, 1)
        for q in range(4):
            A('v_cvt_pk_bf16_f32 %s, %s, %s' % (v(PK + j * 4 + q), v(rr[2 * q]), v(rr[2 * q + 1])))
        rr = accr(4 + j, 0) + accr(4 + j, 1)
        for q in range(4):
            A('v_cvt_pk_bf16_f32 %s, %s, %s' % (v(VV + j * 4 + q), v(rr[2 * q]), v(rr[2 * q + 1])))
    for q in range(4):
        A('v_mov_b32 %s, 0x3f803f80' % v(ONE + q))
    KV, ZZ = 100, 24
    for j in range(2):
        A('v_mfma_f32_16x16x32_bf16 %s, %s, %s, 0' % (v(KV + 4 * j, 4), v(VV + 4 * j, 4), v(PK + 4 * j, 4)))
        A('v_mfma_f32_16x16x32_bf16 %s, %s, %s, 0' % (v(ZZ + 4 * j, 4), v(ONE, 4), v(PK + 4 * j, 4)))
    qregs = accr(0, 0) + accr(0, 1) + accr(1, 0) + accr(1, 1)
    phi(A, qregs, list(range(64, 80)))
    A('s_mul_i32 s5, s28, 2560')
    A('s_add_u32 s5, s5, %d' % LDS_KV)
    A('v_add_u32 v60, s5, v5')
    A('v_add_u32 v63, s5, v61')
    for j in range(2):
        A('ds_write_b128 v60, %s offset:%d' % (v(KV + 4 * j, 4), j * 1280), 'kvw')
        A('ds_write_b32 v63, %s offset:%d' % (v(ZZ + 4 * j), j * 1280 + 1024), 'kvw')
    A('v_lshrrev_b32 v9, 1, v4')
    A('v_lshlrev_b32 v9, 15, v9')
    A('v_lshl_add_u32 v9, v3, 4, v9')
    A('v_and_b32 v8, 1, v4')
    A('v_lshl_add_u32 v9, v8, 3, v9')
    A('s_lshl_b32 s5, s31, 17')
    A('s_lshl_b32 s6, s35, 4')
    A('s_add_u32 s5, s5, s6')
    A('s_add_u32 s5, s5, %d' % WS_PQ)
    A('s_add_u32 s6, s5, 0x10000')
    QP = 64
    for j in range(2):
        for tb in range(2):
            rr = accr(j, tb)
            d = QP + (j * 2 + tb) * 2
            A('v_cvt_pk_bf16_f32 %s, %s, %s' % (v(d), v(rr[0]), v(rr[1])))
            A('v_cvt_pk_bf16_f32 %s, %s, %s' % (v(d + 1), v(rr[2]), v(rr[3])))
            A('buffer_store_dwordx2 %s, v9, s[24:27], %s offen offset:%d' % (v(d, 2), s(5 + j), tb * 256), 'st')
    A.wait(lg='kvw')
    A('s_barrier')
    A('s_cmp_ge_u32 s28, 2')
    A('s_cbranch_scc1 k1_end')
    A('s_mul_i32 s5, s28, 1280')
    A('s_add_u32 s5, s5, %d' % LDS_KV)
    A('v_add_u32 v60, s5, v5')
    A('v_add_u32 v63, s5, v61')
    for w in range(4):
        A('ds_read_b128 %s, v60 offset:%d' % (v(80 + 4 * w, 4), w * 2560), 'kvr')
        A('ds_read_b32 %s, v63 offset:%d' % (v(96 + w), w * 2560 + 1024), 'kvr')
    A('s_lshl_b32 s5, s31, 1')
    A('s_add_u32 s5, s5, s28')
    A('s_lshl_b32 s5, s5, 4')
    A('s_add_u32 s5, s5, s30')
    A('s_lshl_b32 s6, s5, 10')
    A('s_add_u32 s6, s6, %d' % WS_KVP)
    A('s_lshl_b32 s7, s5, 6')
    A('s_add_u32 s7, s7, %d' % WS_ZP)
    A.wait(lg='kvr')
    for r in range(4):
        A('v_add_f32 %s, %s, %s' % (v(80 + r), v(80 + r), v(84 + r)))
        A('v_add_f32 %s, %s, %s' % (v(88 + r), v(88 + r), v(92 + r)))
    A('v_add_f32 v96, v96, v97')
    A('v_add_f32 v98, v98, v99')
    for r in range(4):
        A('v_add_f32 %s, %s, %s' % (v(80 + r), v(80 + r), v(88 + r)))
    A('v_add_f32 v96, v96, v98')
    A('buffer_store_dwordx4 v[80:83], v5, s[24:27], s6 offen', 'st')
    A('s_mov_b64 exec, 0xffff')
    A('buffer_store_dword v96, v61, s[24:27], s7 offen', 'st')
    A.label('k1_end')
    A('s_endpgm')
    return dict(name='k1_kernel', vgpr=160, agpr=128, lds=LDS_KV + 4 * 2560)


def gemm_core(A, *, n_w, n_d, wstride, x_is_a, SXsrd, SWsrd, SPsrd, mid=None):
    D = CFG['D']
    N = n_w + n_d
    ACC = 48
    WFB = [16, 32]
    PB = 16 * D

    def wd(j):
        out = []
        if j >= N:
            return out
        if j < n_w:
            pre = ['s_add_u32 m0, s42, %d' % ((j % D) * 4096)]
            if j > 0:
                pre.append('s_add_u32 s41, s41, %d' % (128 * wstride))
            for q in range(4):
                out.append((pre if q == 0 else [],
                            'buffer_load_dwordx4 %s, %s, s41 offen offset:%d lds' % (v(8 + q), s(SWsrd, 4), q * 1024),
                            ('w', j)))
        else:
            jj = j - n_w
            pre = ['s_add_u32 s43, s43, 16384'] if jj > 0 else []
            for st in range(2):
                for b in range(2):
                    out.append((pre if (st == 0 and b == 0) else [],
                                'buffer_load_dwordx4 %s, %s, %s, s43 offen offset:%d'
                                % (a(PB + jj * 16 + (st * 2 + b) * 4, 4), v(14 + b), s(SPsrd, 4), st * 2048),
                                ('w', j)))
        return out

    def xl(j):
        out = []
        if j >= N or j < 0:
            return out
        pre = ['s_add_u32 s40, s40, 16384'] if j > 0 else []
        for st in range(2):
            for b in range(2):
                out.append((pre if (st == 0 and b == 0) else [],
                            'buffer_load_dwordx4 %s, %s, %s, s40 offen offset:%d'
                            % (a((j % D) * 16 + (st * 2 + b) * 4, 4), v(6 + b), s(SXsrd, 4), st * 2048),
                            ('x', j)))
        return out

    def emit(item):
        pre, ins, tag = item
        for p in pre:
            A(p)
        A(ins, tag)

    def reads(j):
        out = []
        if j >= n_w:
            return out
        for st in range(2):
            for b in range(2):
                for sec in range(2):
                    out.append(('ds_read_b64_tr_b16 %s, %s offset:%d'
                                % (v(WFB[j % 2] + (st * 2 + b) * 4 + sec * 2, 2), v(12 + b),
                                   (j % D) * 4096 + st * 2048 + sec * 512), ('r', j)))
        return out

    for it in wd(0):
        emit(it)
    for j in range(1, D):
        for it in wd(j):
            emit(it)
        for it in xl(j - 1):
            emit(it)
    yield 'prologue'
    A.wait(vm=[('w', 0)])
    for ins, tag in reads(0):
        A(ins, tag)
    for i in range(N):
        if i == n_w and mid is not None:
            mid()
        A.wait(vm=[('x', i), ('w', i + 1), ('w', i)], lg=[('r', i)])
        loads = wd(i + D) + xl(i + D - 1)
        rd = reads(i + 1)
        m = 0
        for st in range(2):
            for xb in range(2):
                for wb in range(2):
                    acc = v(ACC + (xb * 2 + wb) * 16, 16)
                    xf = a((i % D) * 16 + (st * 2 + xb) * 4, 4)
                    if i < n_w:
                        wf = v(WFB[i % 2] + (st * 2 + wb) * 4, 4)
                    else:
                        wf = a(PB + (i - n_w) * 16 + (st * 2 + wb) * 4, 4)
                    cin = '0' if (i == 0 and st == 0) else acc
                    if x_is_a:
                        A('v_mfma_f32_32x32x16_bf16 %s, %s, %s, %s' % (acc, xf, wf, cin))
                    else:
                        A('v_mfma_f32_32x32x16_bf16 %s, %s, %s, %s' % (acc, wf, xf, cin))
                    for _ in range(2):
                        if rd:
                            ins, tag = rd.pop(0)
                            A(ins, tag)
                    if loads:
                        emit(loads.pop(0))
                    m += 1
        assert not loads and not rd
    A('v_add_u32 v16, s42, v5')
    for q in range(1, 4):
        A('s_xor_b32 s5, s28, %d' % q)
        A('s_mul_i32 s5, s5, %d' % (D * 4096))
        A('v_add_u32 %s, s5, v5' % v(16 + q))
    for q in range(1, 4):
        for c in range(4):
            A('ds_write_b128 v16, %s offset:%d' % (v(ACC + q * 16 + c * 4, 4), (q - 1) * 4096 + c * 1024), 'rw')
    A.wait(lg='rw')
    A('s_barrier')
    for q in range(1, 4):
        for c in range(4):
            A('ds_read_b128 %s, %s offset:%d' % (v(ACC + q * 16 + c * 4, 4), v(16 + q), (q - 1) * 4096 + c * 1024),
              ('rr', q))
    A.wait(lg=[('rr', 2)])
    for r in range(16):
        A('v_add_f32 %s, %s, %s' % (v(ACC + 16 + r), v(ACC + 16 + r), v(ACC + 32 + r)))
    A.wait(lg=[('rr', 3)])
    for r in range(16):
        A('v_add_f32 %s, %s, %s' % (v(ACC + r), v(ACC + r), v(ACC + 48 + r)))
    for r in range(16):
        A('v_add_f32 %s, %s, %s' % (v(ACC + r), v(ACC + r), v(ACC + 16 + r)))
    yield 'done'


def gemm_addr_setup(A, wstride, perm_x, perm_w):
    D = CFG['D']
    A('v_lshlrev_b32 v5, 4, v2')
    A('v_and_b32 v3, 31, v2')
    A('v_lshrrev_b32 v4, 5, v2')
    if perm_x:
        A('v_bfe_u32 v6, v3, 2, 1')
        A('v_lshlrev_b32 v6, 4, v6')
        A('v_and_b32 v7, 3, v3')
        A('v_add_u32 v6, v6, v7')
        A('v_lshrrev_b32 v7, 3, v3')
        A('v_lshl_add_u32 v6, v7, 2, v6')
        A('v_lshlrev_b32 v6, 4, v6')
    else:
        A('v_lshlrev_b32 v6, 4, v3')
    A('v_lshl_add_u32 v6, v4, 10, v6')
    A('s_lshr_b32 s5, s28, 1')
    A('s_lshl_b32 s5, s5, 9')
    A('v_or_b32 v6, s5, v6')
    A('v_xor_b32 v7, 512, v6')
    A('v_lshrrev_b32 v9, 3, v2')
    A('v_mul_u32_u24 v8, %d, v9' % wstride)
    A('v_bfe_u32 v9, v2, 4, 1')
    A('v_lshlrev_b32 v9, 2, v9')
    A('v_and_b32 v10, 7, v2')
    A('v_xor_b32 v9, v9, v10')
    A('v_lshl_add_u32 v8, v9, 4, v8')
    for q in range(1, 4):
        A('v_add_u32 %s, %d, v8' % (v(8 + q), q * (8 * wstride - 1024)))
    A('s_mul_i32 s42, s28, %d' % (D * 4096))


def gemm_tr_setup(A, perm_w):
    A('v_bfe_u32 v16, v2, 2, 2')
    A('v_lshl_add_u32 v16, v4, 3, v16')
    A('v_lshlrev_b32 v12, 7, v16')
    A('v_bfe_u32 v16, v2, 3, 1')
    A('v_lshl_add_u32 v12, v16, 6, v12')
    A('v_bfe_u32 v16, v2, 4, 1')
    if perm_w:
        A('v_lshl_add_u32 v12, v16, 4, v12')
        A('v_and_b32 v16, 1, v2')
        A('v_lshl_add_u32 v12, v16, 5, v12')
        A('v_bfe_u32 v16, v2, 1, 1')
        A('v_lshl_add_u32 v12, v16, 3, v12')
    else:
        A('v_lshl_add_u32 v12, v16, 5, v12')
        A('v_and_b32 v16, 3, v2')
        A('v_lshl_add_u32 v12, v16, 3, v12')
    A('s_and_b32 s5, s28, 1')
    A('s_lshl_b32 s5, s5, 6')
    A('v_xor_b32 v12, s5, v12')
    A('v_add_u32 v12, s42, v12')
    A('v_xor_b32 v13, 64, v12')


def gen_k2(A):
    D = CFG['D']
    header(A, 'k2_kernel')
    SWS, SW1, SB1, SWO = 12, 16, 20, 24
    ACC = 48
    A('s_cmp_ge_u32 s2, 256')
    A('s_cbranch_scc1 k2_end')
    A('s_load_dwordx2 s[12:13], s[0:1], 88')
    A('s_load_dwordx2 s[16:17], s[0:1], 32')
    A('s_load_dwordx2 s[20:21], s[0:1], 40')
    A('s_load_dwordx2 s[24:25], s[0:1], 16')
    A('v_lshrrev_b32 v1, 6, v0')
    A('v_and_b32 v2, 63, v0')
    A('v_readfirstlane_b32 s28, v1')
    srd(A, SWS, WS_SIZE)
    srd(A, SW1, 2048 * 1792 * 2)
    srd(A, SB1, 1792 * 2)
    srd(A, SWO, 512 * 512 * 2)
    A('s_and_b32 s3, s2, 7')
    A('s_lshr_b32 s4, s2, 3')
    A('s_cmp_ge_u32 s4, 28')
    A('s_cbranch_scc1 k2_spare')
    A('s_and_b32 s5, s3, 1')
    A('s_lshl_b32 s5, s5, 2')
    A('s_and_b32 s6, s4, 3')
    A('s_add_u32 s30, s5, s6')
    A('s_lshr_b32 s5, s3, 1')
    A('s_mul_i32 s5, s5, 7')
    A('s_lshr_b32 s6, s4, 2')
    A('s_add_u32 s31, s5, s6')
    gemm_addr_setup(A, 3584, perm_x=False, perm_w=True)
    A('s_lshl_b32 s40, s30, 18')
    A('s_lshl_b32 s5, s28, 12')
    A('s_add_u32 s40, s40, s5')
    if WS_HT:
        A('s_add_u32 s40, s40, %d' % WS_HT)
    A('s_mul_i32 s41, s28, %d' % (32 * 3584))
    A('s_lshl_b32 s5, s31, 7')
    A('s_add_u32 s41, s41, s5')
    A('v_lshlrev_b32 v14, 5, v4')
    A('s_and_b32 s6, s28, 1')
    A('s_lshl_b32 s6, s6, 6')
    A('s_add_u32 s44, s5, s6')
    A.wait_all(vm=False)
    core = gemm_core(A, n_w=16, n_d=0, wstride=3584, x_is_a=False, SXsrd=SWS, SWsrd=SW1, SPsrd=SWS)
    next(core)
    BI = 112
    A('buffer_load_dwordx4 %s, v14, s[20:23], s44 offen' % v(BI, 4), 'b')
    A('buffer_load_dwordx4 %s, v14, s[20:23], s44 offen offset:16' % v(BI + 4, 4), 'b')
    gemm_tr_setup(A, perm_w=True)
    next(core)
    A.wait(vm='b')
    BF = 16
    unpack(A, BI, 8, BF)
    T = 64
    c2 = -2.0 * math.sqrt(2.0 / math.pi) * LOG2E
    A('v_mov_b32 v32, %s' % f32(c2))
    for r in range(16):
        A('v_add_f32 %s, %s, %s' % (v(ACC + r), v(ACC + r), v(BF + r)))
    for r in range(16):
        A('v_mul_f32 %s, %s, %s' % (v(T + r), v(ACC + r), v(ACC + r)))
    for r in range(16):
        A('v_fmamk_f32 %s, %s, %s, v32' % (v(T + r), v(T + r), f32(c2 * 0.044715)))
    for r in range(16):
        A('v_mul_f32 %s, %s, %s' % (v(T + r), v(T + r), v(ACC + r)))
    for r in range(16):
        A('v_exp_f32 %s, %s' % (v(T + r), v(T + r)))
    for r in range(16):
        A('v_add_f32 %s, 1.0, %s' % (v(T + r), v(T + r)))
    for r in range(16):
        A('v_rcp_f32 %s, %s' % (v(T + r), v(T + r)))
    for r in range(16):
        A('v_mul_f32 %s, %s, %s' % (v(T + r), v(T + r), v(ACC + r)))
    for q in range(8):
        A('v_cvt_pk_bf16_f32 %s, %s, %s' % (v(80 + q), v(T + 2 * q), v(T + 2 * q + 1)))
    A('v_lshlrev_b32 v14, 4, v3')
    A('v_lshl_add_u32 v14, v4, 11, v14')
    A('s_mul_i32 s5, s30, %d' % UM_TILE)
    A('s_lshl_b32 s6, s31, 13')
    A('s_add_u32 s5, s5, s6')
    A('s_and_b32 s6, s28, 1')
    A('s_lshl_b32 s6, s6, 12')
    A('s_add_u32 s5, s5, s6')
    A('s_lshr_b32 s6, s28, 1')
    A('s_lshl_b32 s6, s6, 9')
    A('s_add_u32 s5, s5, s6')
    A('s_add_u32 s5, s5, %d' % WS_UM)
    A('buffer_store_dwordx4 v[80:83], v14, s[12:15], s5 offen', 'st')
    A('buffer_store_dwordx4 v[84:87], v14, s[12:15], s5 offen offset:1024', 'st')
    A('s_endpgm')
    A.label('k2_spare')
    A.reset_counters()
    A.smem = True
    A('s_lshl_b32 s30, s3, 2')
    A('s_add_u32 s30, s30, s4')
    A('s_sub_u32 s30, s30, 28')
    A('v_lshlrev_b32 v5, 4, v2')
    A('v_lshlrev_b32 v6, 2, v2')
    A('v_lshlrev_b32 v7, 4, v0')
    A('v_lshlrev_b32 v8, 2, v0')
    A('v_and_b32 v3, 15, v2')
    A('v_lshrrev_b32 v4, 4, v2')
    A('v_lshlrev_b32 v9, 10, v4')
    A('v_lshl_add_u32 v9, v3, 4, v9')
    A('s_lshl_b32 s31, s30, 14')
    A('s_add_u32 s32, s31, %d' % WS_KVP)
    A('s_lshl_b32 s33, s30, 10')
    A('s_add_u32 s33, s33, %d' % WS_ZP)
    A('s_lshl_b32 s34, s28, 8')
    A('s_add_u32 s34, s34, s31')
    A('s_lshl_b32 s35, s28, 12')
    A('s_lshl_b32 s36, s30, 16')
    A('s_add_u32 s36, s36, %d' % WS_PQ)
    A.wait_all(vm=False)
    ZR, KVR, PQR, GR = 10, 16, 80, 144
    for i in range(4):
        A('buffer_load_dword %s, v6, s[12:15], s33 offen offset:%d' % (v(ZR + i), i * 256), 'z')
    for i in range(16):
        if i % 4 == 0 and i:
            A('s_add_u32 s32, s32, 4096')
        A('buffer_load_dwordx4 %s, v5, s[12:15], s32 offen offset:%d' % (v(KVR + 4 * i, 4), (i % 4) * 1024), 'kv')
    for q in range(4):
        A('s_add_u32 m0, s35, %d' % (q * 1024))
        A('s_add_u32 s37, s34, %d' % (q * 4096))
        A('buffer_load_dwordx4 v9, s[24:27], s37 offen lds', 'wo')
    A('s_mov_b32 s38, %d' % WS_G)
    for i in range(8):
        A('s_add_u32 s37, s36, %d' % (i * 4096))
        A('s_add_u32 s39, s36, %d' % (i * 4096 + 32768))
        A('buffer_load_dwordx4 %s, v7, s[12:15], s37 offen' % v(PQR + 8 * i, 4), ('pq', i))
        A('buffer_load_dwordx4 %s, v7, s[12:15], s39 offen' % v(PQR + 8 * i + 4, 4), ('pq', i))
        if i == 4:
            A('s_add_u32 s38, s38, 4096')
        A('buffer_load_dword %s, v8, s[12:15], s38 offen offset:%d' % (v(GR + i), (i % 4) * 1024), ('pq', i))
    A.wait(vm='z')
    A('v_add_f32 v10, v10, v11')
    A('v_add_f32 v12, v12, v13')
    A('v_add_f32 v10, v10, v12')
    cross_rows(A, [10], [11])
    ZS = 48
    for c in range(16):
        A('v_readlane_b32 %s, v10, %d' % (s(ZS + c), c))
    A.wait(vm='kv')
    n = 16
    while n > 1:
        n //= 2
        for i in range(n):
            for r in range(4):
                A('v_add_f32 %s, %s, %s' % (v(KVR + 4 * i + r), v(KVR + 4 * i + r), v(KVR + 4 * (i + n) + r)))
    A('v_cvt_pk_bf16_f32 v12, %s, %s' % (v(KVR), v(KVR + 1)))
    A('v_cvt_pk_bf16_f32 v13, %s, %s' % (v(KVR + 2), v(KVR + 3)))
    A('v_lshrrev_b32 v14, 2, v2')
    A('v_lshlrev_b32 v14, 8, v14')
    A('v_and_b32 v15, 3, v2')
    A('v_lshl_add_u32 v14, v15, 3, v14')
    A('v_add_u32 v14, s35, v14')
    A.wait(vm='wo')
    for nb in range(8):
        A('ds_read_b64_tr_b16 %s, v14 offset:%d' % (v(20 + 2 * nb, 2), nb * 32), 'wt')
    A.wait(lg='wt')
    for nb in range(8):
        A('v_mfma_f32_16x16x16_bf16 %s, v[12:13], %s, 0' % (v(40 + 4 * nb, 4), v(20 + 2 * nb, 2)))
    A('v_lshrrev_b32 v14, 1, v4')
    A('v_lshlrev_b32 v14, 10, v14')
    A('v_lshl_add_u32 v14, v3, 4, v14')
    A('v_and_b32 v15, 1, v4')
    A('v_lshl_add_u32 v14, v15, 3, v14')
    A('s_mul_i32 s5, s28, %d' % (2 * UM_TILE))
    A('s_lshl_b32 s6, s30, 11')
    A('s_add_u32 s5, s5, s6')
    A('s_add_u32 s5, s5, %d' % (WS_UM + 224 * 1024))
    A('s_add_u32 s6, s5, %d' % UM_TILE)
    for nb in range(8):
        A('v_cvt_pk_bf16_f32 %s, %s, %s' % (v(20 + 2 * nb), v(40 + 4 * nb), v(41 + 4 * nb)))
        A('v_cvt_pk_bf16_f32 %s, %s, %s' % (v(21 + 2 * nb), v(42 + 4 * nb), v(43 + 4 * nb)))
        A('buffer_store_dwordx2 %s, v14, s[12:15], %s offen offset:%d'
          % (v(20 + 2 * nb, 2), s(5 + nb // 4), (nb % 4) * 256), 'st')
    A('s_lshl_b32 s5, s28, 16')
    A('s_lshl_b32 s6, s30, 11')
    A('s_add_u32 s5, s5, s6')
    A('s_add_u32 s5, s5, %d' % WS_PP)
    for i in range(8):
        U = 40 + (i % 2) * 20
        A.wait(vm=[('pq', i)])
        unpack(A, PQR + 8 * i, 8, U)
        A('v_mov_b32 %s, %s' % (v(U + 16), f32(1e-6)))
        A('v_mul_f32 %s, %s, %s' % (v(U + 17), s(ZS + 1), v(U + 1)))
        A('v_fmac_f32 %s, %s, %s' % (v(U + 16), s(ZS), v(U)))
        for c in range(2, 16):
            A('v_fmac_f32 %s, %s, %s' % (v(U + 16 + c % 2), s(ZS + c), v(U + c)))
        A('v_add_f32 %s, %s, %s' % (v(U + 16), v(U + 16), v(U + 17)))
        A('v_rcp_f32 %s, %s' % (v(U + 16), v(U + 16)))
        A('v_mul_f32 %s, %s, %s' % (v(U + 16), v(U + 16), v(GR + i)))
        for c in range(16):
            A('v_mul_f32 %s, %s, %s' % (v(U + c), v(U + c), v(U + 16)))
        for q in range(8):
            A('v_cvt_pk_bf16_f32 %s, %s, %s' % (v(PQR + 8 * i + q), v(U + 2 * q), v(U + 2 * q + 1)))
        A('buffer_store_dwordx4 %s, v5, s[12:15], s5 offen' % v(PQR + 8 * i, 4), 'st')
        A('buffer_store_dwordx4 %s, v5, s[12:15], s5 offen offset:1024' % v(PQR + 8 * i + 4, 4), 'st')
        if i < 7:
            A('s_add_u32 s5, s5, 0x40000')
    A.label('k2_end')
    A('s_endpgm')
    return dict(name='k2_kernel', vgpr=152, agpr=16 * D, lds=max(4 * D * 4096, 84 * 1024))


def gen_k3(A):
    D = CFG['D']
    header(A, 'k3_kernel')
    SWS, SW2, SB2, SOUT = 12, 16, 20, 24
    ACC = 48
    A('s_cmp_ge_u32 s2, 256')
    A('s_cbranch_scc1 k3_end')
    A('s_load_dwordx2 s[12:13], s[0:1], 88')
    A('s_load_dwordx2 s[16:17], s[0:1], 48')
    A('s_load_dwordx2 s[20:21], s[0:1], 56')
    A('s_load_dwordx2 s[24:25], s[0:1], 72')
    A('v_lshrrev_b32 v1, 6, v0')
    A('v_and_b32 v2, 63, v0')
    A('v_readfirstlane_b32 s28, v1')
    srd(A, SWS, WS_SIZE)
    srd(A, SW2, 2048 * 1792 * 2)
    srd(A, SB2, 2048 * 2)
    srd(A, SOUT, 2048 * 512 * 2)
    A('s_and_b32 s3, s2, 7')
    A('s_lshr_b32 s4, s2, 3')
    A('s_and_b32 s30, s4, 7')
    A('s_lshl_b32 s5, s3, 2')
    A('s_lshr_b32 s6, s4, 3')
    A('s_add_u32 s31, s5, s6')
    gemm_addr_setup(A, 4096, perm_x=True, perm_w=False)
    A('s_mul_i32 s40, s30, %d' % UM_TILE)
    A('s_lshl_b32 s5, s28, 12')
    A('s_add_u32 s40, s40, s5')
    A('s_add_u32 s40, s40, %d' % WS_UM)
    A('s_lshl_b32 s43, s31, 16')
    A('s_add_u32 s43, s43, s5')
    A('s_add_u32 s43, s43, %d' % WS_PP)
    A('s_lshl_b32 s41, s28, 17')
    A('s_lshl_b32 s5, s31, 7')
    A('s_add_u32 s41, s41, s5')
    A('v_lshlrev_b32 v14, 4, v3')
    A('v_lshl_add_u32 v14, v4, 10, v14')
    A('s_and_b32 s6, s28, 1')
    A('s_lshl_b32 s7, s6, 9')
    A('v_or_b32 v14, s7, v14')
    A('v_xor_b32 v15, 512, v14')
    A('s_lshl_b32 s7, s6, 5')
    A('v_or_b32 v112, s7, v3')
    A('v_lshlrev_b32 v113, 2, v112')
    A('v_xor_b32 v114, 128, v113')
    A('v_lshlrev_b32 v115, 1, v112')
    A('s_lshl_b32 s44, s31, 8')
    A('s_add_u32 s44, s44, %d' % WS_G)
    A.wait_all(vm=False)

    def mid():
        A.wait(vm='g')
        A('v_sub_f32 v116, 1.0, v116')
        A('v_sub_f32 v117, 1.0, v117')
        for q in range(4):
            for r in range(16):
                A('v_mul_f32 %s, %s, %s' % (v(ACC + q * 16 + r), v(ACC + q * 16 + r), v(116 + (q & 1))))

    core = gemm_core(A, n_w=14, n_d=4, wstride=4096, x_is_a=True, SXsrd=SWS, SWsrd=SW2, SPsrd=SWS, mid=mid)
    next(core)
    A('buffer_load_dword v116, v113, s[12:15], s44 offen', 'g')
    A('buffer_load_dword v117, v114, s[12:15], s44 offen', 'g')
    A('buffer_load_ushort v118, v115, s[20:23], s5 offen', 'g')
    gemm_tr_setup(A, perm_w=False)
    next(core)
    A('v_lshlrev_b32 v118, 16, v118')
    A('v_mul_f32 v118, v118, v116')
    for r in range(16):
        A('v_add_f32 %s, %s, v118' % (v(ACC + r), v(ACC + r)))
    for q in range(8):
        A('v_cvt_pk_bf16_f32 %s, %s, %s' % (v(80 + q), v(ACC + 2 * q), v(ACC + 2 * q + 1)))
    A('v_lshlrev_b32 v14, 10, v112')
    A('v_lshl_add_u32 v14, v4, 5, v14')
    A('s_lshl_b32 s5, s31, 16')
    A('s_lshl_b32 s6, s30, 7')
    A('s_add_u32 s5, s5, s6')
    A('s_lshr_b32 s6, s28, 1')
    A('s_lshl_b32 s6, s6, 6')
    A('s_add_u32 s5, s5, s6')
    A('buffer_store_dwordx4 v[80:83], v14, s[24:27], s5 offen', 'st')
    A('buffer_store_dwordx4 v[84:87], v14, s[24:27], s5 offen offset:16', 'st')
    A.label('k3_end')
    A('s_endpgm')
    return dict(name='k3_kernel', vgpr=120, agpr=16 * D + 64, lds=max(4 * D * 4096, 84 * 1024))


def build(out_path):
    A = Asm()
    infos = [gen_k1(A), gen_k2(A), gen_k3(A)]
    ref = open(REF).read().split('\n')
    head = [l for l in ref if l.startswith(';') and '@launch' not in l and 'Override launch' not in l
            and 'grid=ceil' not in l]
    txt = '\n'.join(head) + '\n'
    for k in infos:
        txt += '; @launch kernel=%s grid=(256,1,1) block=(256,1,1) lds=%d\n' % (k['name'], k['lds'])
    txt += '.amdgcn_target "amdgcn-amd-amdhsa--gfx950"\n.text\n'
    txt += A.text()
    txt += '.section .rodata,"a"\n'
    for k in infos:
        acc_off = (k['vgpr'] + 3) // 4 * 4
        txt += '''.p2align 6
.amdhsa_kernel %s
  .amdhsa_next_free_vgpr %d
  .amdhsa_next_free_sgpr 102
  .amdhsa_accum_offset %d
  .amdhsa_group_segment_fixed_size 0
  .amdhsa_kernarg_size 96
  .amdhsa_user_sgpr_count 2
  .amdhsa_user_sgpr_kernarg_segment_ptr 1
  .amdhsa_system_sgpr_workgroup_id_x 1
.end_amdhsa_kernel
''' % (k['name'], acc_off + k['agpr'], acc_off)
    open(out_path, 'w').write(txt)


if __name__ == '__main__':
    out = sys.argv[1] if len(sys.argv) > 1 else 'cdna_kernels/%s.s' % NAME
    for kv in sys.argv[2:]:
        k, val = kv.split('=')
        CFG[k] = int(val)
    build(out)
```

```python
import sys
import math
from asmlib import Asm, f32, v, a, s

NAME = 'gated_mix__linear_attn_block__mixer_token_mlp__prompt'
REF = 'cdna_kernels/%s.s.ref' % NAME

WS_HT = 0x000000
WS_PQ = 0x200000
WS_PP = 0x400000
WS_UM = 0x600000
WS_KVP = 0x880000
WS_ZP = 0x900000
WS_G = 0x910000
WS_SIZE = 0x1000000
UM_TILE = 288 * 1024

LOG2E = 1.4426950408889634

CFG = dict(D=5, NCH=4)


def NT():
    return ' nt' if CFG.get('NT') else ''


def srd(A, base, size):
    A('s_mov_b32 %s, 0x%x' % (s(base + 2), size))
    A('s_mov_b32 %s, 0x20000' % s(base + 3))


def phi(A, regs, tmp):
    for r, t in zip(regs, tmp):
        A('v_mul_f32 %s, %s, %s' % (v(t), f32(LOG2E), v(r)))
    for r, t in zip(regs, tmp):
        A('v_exp_f32_e64 %s, %s clamp' % (v(t), v(t)))
        A('v_max_f32 %s, 0, %s' % (v(r), v(r)))
    for r, t in zip(regs, tmp):
        A('v_add_f32 %s, %s, %s' % (v(r), v(r), v(t)))
    for r, t in zip(regs, tmp):
        A('v_add_f32 %s, %s, %s' % (v(r), f32(1e-6), v(r)))


def allreduce(A, regs, tmps):
    for mod in ('quad_perm:[1,0,3,2]', 'quad_perm:[2,3,0,1]', 'row_half_mirror', 'row_mirror'):
        for r in regs:
            A('v_add_f32_dpp %s, %s, %s %s row_mask:0xf bank_mask:0xf' % (v(r), v(r), v(r), mod))
    cross_rows(A, regs, tmps)


def cross_rows(A, regs, tmps):
    for ins in ('v_permlane16_swap_b32', 'v_permlane32_swap_b32'):
        for r, t in zip(regs, tmps):
            A('v_mov_b32 %s, %s' % (v(t), v(r)))
        for r, t in zip(regs, tmps):
            A('%s %s, %s' % (ins, v(r), v(t)))
        for r, t in zip(regs, tmps):
            A('v_add_f32 %s, %s, %s' % (v(r), v(r), v(t)))


def unpack(A, src, n, dst):
    for i in range(n):
        A('v_lshlrev_b32 %s, 16, %s' % (v(dst + 2 * i), v(src + i)))
        A('v_and_b32 %s, 0xffff0000, %s' % (v(dst + 2 * i + 1), v(src + i)))


STAMP = {'n': 0}


def stamp(A, real=False):
    if not CFG.get('STAMPS'):
        return
    n = STAMP['n']
    assert n < 19
    A.raw('%s %s' % ('s_memrealtime' if real else 's_memtime', s(64 + 2 * n, 2)))
    STAMP['n'] = n + 1


def dump_stamps(A, kidx, srdws):
    if not CFG.get('STAMPS'):
        return
    stamp(A)
    stamp(A, real=True)
    A('s_mov_b64 exec, -1')
    A('s_waitcnt lgkmcnt(0)')
    A('v_mov_b32 v1, 0')
    for i in range(2 * STAMP['n']):
        A('v_writelane_b32 v1, %s, %d' % (s(64 + i), i))
    A('s_lshl_b32 s5, s2, 2')
    A('s_add_u32 s5, s5, s28')
    A('s_lshl_b32 s5, s5, 8')
    A('s_add_u32 s5, s5, %d' % (0xA00000 + kidx * 0x40000))
    A('v_lshlrev_b32 v2, 2, v2')
    A('buffer_store_dword v1, v2, %s, s5 offen' % s(srdws, 4))


def header(A, name):
    A.raw('.globl %s' % name)
    A.raw('.p2align 8')
    A.raw('.type %s,@function' % name)
    A.label(name)
    A.reset_counters()
    STAMP['n'] = 0
    stamp(A, real=True)
    stamp(A)


def gen_k1(A):
    NCH = CFG['NCH']
    KPC = 16 // NCH
    header(A, 'k1_kernel')
    LDS_LN = 98304
    LN_STRIDE = 1088
    LDS_KV = LDS_LN + 8 * LN_STRIDE
    SX, SW, SG, SWS = 12, 16, 20, 24
    A('s_cmp_ge_u32 s2, 256')
    A('s_cbranch_scc1 k1_end')
    A('s_load_dwordx2 s[12:13], s[0:1], 0')
    A('s_load_dwordx2 s[16:17], s[0:1], 8')
    A('s_load_dwordx2 s[20:21], s[0:1], 64')
    A('s_load_dwordx2 s[24:25], s[0:1], 88')
    A('v_lshrrev_b32 v1, 6, v0')
    A('v_and_b32 v2, 63, v0')
    A('v_readfirstlane_b32 s28, v1')
    srd(A, SX, 2048 * 512 * 2)
    srd(A, SW, 512 * 1536 * 2)
    srd(A, SG, 1024)
    srd(A, SWS, WS_SIZE)
    A('s_and_b32 s3, s2, 7')
    A('s_lshr_b32 s4, s2, 3')
    A('s_lshr_b32 s5, s3, 1')
    A('s_lshl_b32 s5, s5, 2')
    A('s_and_b32 s6, s4, 3')
    A('s_add_u32 s30, s5, s6')
    A('s_and_b32 s5, s3, 1')
    A('s_lshl_b32 s5, s5, 3')
    A('s_lshr_b32 s6, s4, 2')
    A('s_add_u32 s31, s5, s6')
    A('v_and_b32 v3, 15, v2')
    A('v_lshrrev_b32 v4, 4, v2')
    A('v_lshlrev_b32 v5, 4, v2')
    A('v_lshlrev_b32 v6, 10, v3')
    A('v_lshl_add_u32 v6, v4, 4, v6')
    A('v_add_u32 v7, 0x4000, v6')
    A('v_lshrrev_b32 v9, 2, v2')
    A('v_mul_u32_u24 v8, 3072, v9')
    A('v_lshrrev_b32 v9, 5, v2')
    A('v_lshlrev_b32 v9, 1, v9')
    A('v_and_b32 v10, 3, v2')
    A('v_xor_b32 v9, v9, v10')
    A('v_lshl_add_u32 v8, v9, 4, v8')
    A('s_lshl_b32 s5, s30, 7')
    A('s_lshl_b32 s6, s31, 3')
    A('s_add_u32 s33, s5, s6')
    A('s_lshl_b32 s6, s28, 1')
    A('s_add_u32 s32, s33, s6')
    A('s_lshl_b32 s32, s32, 10')
    A('s_lshl_b32 s6, s28, 5')
    A('s_add_u32 s35, s5, s6')
    A('s_lshl_b32 s34, s35, 10')
    RPW = 512 // NCH // 4
    NJ = RPW // 16
    A('s_mul_i32 s36, s28, %d' % (RPW * 3072))
    A('s_lshl_b32 s6, s31, 6')
    A('s_add_u32 s36, s36, s6')
    A('s_mul_i32 s37, s28, %d' % (NJ * 3072))
    A.wait_all(vm=False)
    stamp(A)
    LNA, LNB, LNG = 16, 20, 24
    A('buffer_load_dwordx4 %s, v5, s[12:15], s32 offen' % v(LNA, 4), 'ln')
    A('buffer_load_dwordx4 %s, v5, s[12:15], s32 offen offset:1024' % v(LNB, 4), 'ln')
    A('buffer_load_dwordx4 %s, v5, s[20:23], 0 offen' % v(LNG, 4), 'ln')
    XB = 0
    for c in range(NCH):
        for j in range(NJ):
            A('s_add_u32 m0, s37, %d' % ((c * 4 * NJ + j) * 3072))
            A('s_add_u32 s38, s36, %d' % ((c * 4 * RPW + 16 * j) * 3072))
            for t in range(3):
                A('buffer_load_dwordx4 v8, s[16:19], s38 offen offset:%d%s lds' % (1024 * t, NT()), ('ch', c))
        for ks in range(c * KPC, (c + 1) * KPC):
            for tb in range(2):
                A('buffer_load_dwordx4 %s, %s, s[12:15], s34 offen offset:%d%s'
                  % (a(XB + (ks * 2 + tb) * 4, 4), v(6 + tb), ks * 64, NT()), ('ch', c))
    A('v_lshrrev_b32 v9, 1, v4')
    A('v_mul_u32_u24 v10, 3072, v9')
    A('v_and_b32 v9, 1, v4')
    A('v_lshl_add_u32 v10, v9, 9, v10')
    A('v_lshl_add_u32 v10, v9, 5, v10')
    A('v_lshrrev_b32 v14, 2, v3')
    A('v_lshl_add_u32 v10, v14, 6, v10')
    A('v_and_b32 v15, 3, v3')
    A('v_lshl_add_u32 v10, v15, 3, v10')
    A('v_xor_b32 v11, 32, v10')
    A('v_add_u32 v12, 49152, v10')
    A('v_add_u32 v13, 49152, v11')
    stamp(A)
    A.wait(vm='ln')
    stamp(A)
    XA, XBb, GW = 32, 40, 48
    unpack(A, LNA, 4, XA)
    unpack(A, LNB, 4, XBb)
    unpack(A, LNG, 4, GW)
    SA, SB, DA, DB = 56, 57, 58, 59
    A('v_add_f32 %s, %s, %s' % (v(SA), v(XA), v(XA + 1)))
    A('v_add_f32 %s, %s, %s' % (v(SB), v(XBb), v(XBb + 1)))
    A('v_mul_f32 %s, %s, %s' % (v(DA), v(XA), v(GW)))
    A('v_mul_f32 %s, %s, %s' % (v(DB), v(XBb), v(GW)))
    for i in range(1, 8):
        if i >= 2:
            A('v_add_f32 %s, %s, %s' % (v(SA), v(SA), v(XA + i)))
            A('v_add_f32 %s, %s, %s' % (v(SB), v(SB), v(XBb + i)))
        A('v_fmac_f32 %s, %s, %s' % (v(DA), v(XA + i), v(GW + i)))
        A('v_fmac_f32 %s, %s, %s' % (v(DB), v(XBb + i), v(GW + i)))
    allreduce(A, [SA, SB, DA, DB], [60, 61, 62, 63])
    A('v_mul_f32 %s, %s, %s' % (v(SA), f32(1 / 512), v(SA)))
    A('v_mul_f32 %s, %s, %s' % (v(SB), f32(1 / 512), v(SB)))
    for i in range(8):
        A('v_sub_f32 %s, %s, %s' % (v(XA + i), v(XA + i), v(SA)))
        A('v_sub_f32 %s, %s, %s' % (v(XBb + i), v(XBb + i), v(SB)))
    A('v_mul_f32 %s, %s, %s' % (v(SA), v(XA), v(XA)))
    A('v_mul_f32 %s, %s, %s' % (v(SB), v(XBb), v(XBb)))
    for i in range(1, 8):
        A('v_fmac_f32 %s, %s, %s' % (v(SA), v(XA + i), v(XA + i)))
        A('v_fmac_f32 %s, %s, %s' % (v(SB), v(XBb + i), v(XBb + i)))
    allreduce(A, [SA, SB], [60, 61])
    A('v_mov_b32 v60, %s' % f32(1e-5))
    A('v_fmamk_f32 %s, %s, %s, v60' % (v(SA), v(SA), f32(1 / 512)))
    A('v_fmamk_f32 %s, %s, %s, v60' % (v(SB), v(SB), f32(1 / 512)))
    A('v_rsq_f32 %s, %s' % (v(SA), v(SA)))
    A('v_rsq_f32 %s, %s' % (v(SB), v(SB)))
    A('v_cmp_eq_u32 vcc, 0, v2')
    A('v_lshlrev_b32 v61, 2, v2')
    A('v_cndmask_b32 %s, %s, %s, vcc' % (v(DA), v(DB), v(DA)))
    A('v_mul_f32 %s, %s, %s' % (v(DA), f32(-LOG2E), v(DA)))
    A('v_exp_f32 %s, %s' % (v(DA), v(DA)))
    for i in range(8):
        A('v_mul_f32 %s, %s, %s' % (v(XA + i), v(XA + i), v(SA)))
        A('v_mul_f32 %s, %s, %s' % (v(XBb + i), v(XBb + i), v(SB)))
    A('v_add_f32 %s, 1.0, %s' % (v(DA), v(DA)))
    A('v_rcp_f32 %s, %s' % (v(DA), v(DA)))
    for i in range(4):
        A('v_cvt_pk_bf16_f32 %s, %s, %s' % (v(LNA + i), v(XA + 2 * i), v(XA + 2 * i + 1)))
        A('v_cvt_pk_bf16_f32 %s, %s, %s' % (v(LNB + i), v(XBb + 2 * i), v(XBb + 2 * i + 1)))
    A('s_mul_i32 s5, s28, %d' % (2 * LN_STRIDE))
    A('s_add_u32 s5, s5, %d' % LDS_LN)
    A('v_add_u32 v60, s5, v5')
    A('ds_write_b128 v60, %s' % v(LNA, 4), 'lnw')
    A('ds_write_b128 v60, %s offset:%d' % (v(LNB, 4), LN_STRIDE), 'lnw')
    A('s_lshr_b32 s5, s32, 8')
    A('s_add_u32 s5, s5, %d' % WS_G)
    A('s_mov_b64 exec, 3')
    A('buffer_store_dword %s, v61, s[24:27], s5 offen' % v(DA), 'st')
    A('s_mov_b64 exec, -1')
    A('v_mul_u32_u24 v62, %d, v14' % LN_STRIDE)
    A('v_lshl_add_u32 v62, v4, 5, v62')
    A('v_lshl_add_u32 v62, v15, 3, v62')
    A('s_lshl_b32 s5, s28, 8')
    A('s_add_u32 s5, s5, %d' % LDS_LN)
    A('v_add_u32 v62, s5, v62')
    WF = [64, 88]
    ACC = 112
    HTR = 16

    def reads(ks):
        out = []
        for t in range(3):
            for j in range(2):
                for sec in range(2):
                    base = 10 + j + (2 if ks >= 8 else 0)
                    off = (ks % 8) * 6144 + t * 1024 + sec * 256
                    out.append(('ds_read_b64_tr_b16 %s, %s offset:%d'
                                % (v(WF[ks % 2] + (t * 2 + j) * 4 + sec * 2, 2), v(base), off), ('wf', ks, t * 2 + j)))
        return out

    for ks in range(16):
        if ks % KPC == 0:
            stamp(A)
            A.wait(vm=[('ch', ks // KPC)], lg=['lnw'])
            A('s_barrier')
            stamp(A)
            for ins, tag in reads(ks):
                A(ins, tag)
        nxt = reads(ks + 1) if (ks + 1) % KPC != 0 else []
        for cb in range(6):
            A.wait(lg=[('wf', ks, cb)])
            for tb in range(2):
                acc = v(ACC + (cb * 2 + tb) * 4, 4)
                wf = v(WF[ks % 2] + cb * 4, 4)
                xf = a(XB + (ks * 2 + tb) * 4, 4)
                c_in = '0' if ks == 0 else acc
                if cb < 2:
                    A('v_mfma_f32_16x16x32_bf16 %s, %s, %s, %s' % (acc, wf, xf, c_in))
                else:
                    A('v_mfma_f32_16x16x32_bf16 %s, %s, %s, %s' % (acc, xf, wf, c_in))
                if nxt:
                    ins, tag = nxt.pop(0)
                    A(ins, tag)
        if ks == KPC - 1:
            for rnd in range(2):
                for sec in range(2):
                    A('ds_read_b64_tr_b16 %s, v62 offset:%d'
                      % (v(HTR + rnd * 4 + sec * 2, 2), rnd * 128 + sec * 4 * LN_STRIDE), 'htr')
            A('s_lshl_b32 s5, s28, 19')
            A('s_lshl_b32 s6, s33, 7')
            A('s_add_u32 s5, s5, s6')
            if WS_HT:
                A('s_add_u32 s5, s5, %d' % WS_HT)
            A('s_add_u32 s6, s5, 0x40000')
            A.wait(lg='htr')
            A('buffer_store_dwordx4 %s, v5, s[24:27], s5 offen' % v(HTR, 4), 'st')
            A('buffer_store_dwordx4 %s, v5, s[24:27], s6 offen' % v(HTR + 4, 4), 'st')
    stamp(A)

    def accr(cb, tb):
        return [ACC + (cb * 2 + tb) * 4 + r for r in range(4)]

    kregs = accr(2, 0) + accr(2, 1) + accr(3, 0) + accr(3, 1)
    phi(A, kregs, list(range(64, 80)))
    PK, VV, ONE = 80, 88, 96
    for j in range(2):
        rr = accr(2 + j, 0) + accr(2 + j, 1)
        for q in range(4):
            A('v_cvt_pk_bf16_f32 %s, %s, %s' % (v(PK + j * 4 + q), v(rr[2 * q]), v(rr[2 * q + 1])))
        rr = accr(4 + j, 0) + accr(4 + j, 1)
        for q in range(4):
            A('v_cvt_pk_bf16_f32 %s, %s, %s' % (v(VV + j * 4 + q), v(rr[2 * q]), v(rr[2 * q + 1])))
    for q in range(4):
        A('v_mov_b32 %s, 0x3f803f80' % v(ONE + q))
    KV, ZZ = 100, 24
    for j in range(2):
        A('v_mfma_f32_16x16x32_bf16 %s, %s, %s, 0' % (v(KV + 4 * j, 4), v(VV + 4 * j, 4), v(PK + 4 * j, 4)))
        A('v_mfma_f32_16x16x32_bf16 %s, %s, %s, 0' % (v(ZZ + 4 * j, 4), v(ONE, 4), v(PK + 4 * j, 4)))
    qregs = accr(0, 0) + accr(0, 1) + accr(1, 0) + accr(1, 1)
    phi(A, qregs, list(range(64, 80)))
    A('s_mul_i32 s5, s28, 2560')
    A('s_add_u32 s5, s5, %d' % LDS_KV)
    A('v_add_u32 v60, s5, v5')
    A('v_add_u32 v63, s5, v61')
    for j in range(2):
        A('ds_write_b128 v60, %s offset:%d' % (v(KV + 4 * j, 4), j * 1280), 'kvw')
        A('ds_write_b32 v63, %s offset:%d' % (v(ZZ + 4 * j), j * 1280 + 1024), 'kvw')
    A('v_lshrrev_b32 v9, 1, v4')
    A('v_lshlrev_b32 v9, 15, v9')
    A('v_lshl_add_u32 v9, v3, 4, v9')
    A('v_and_b32 v8, 1, v4')
    A('v_lshl_add_u32 v9, v8, 3, v9')
    A('s_lshl_b32 s5, s31, 17')
    A('s_lshl_b32 s6, s35, 4')
    A('s_add_u32 s5, s5, s6')
    A('s_add_u32 s5, s5, %d' % WS_PQ)
    A('s_add_u32 s6, s5, 0x10000')
    QP = 64
    for j in range(2):
        for tb in range(2):
            rr = accr(j, tb)
            d = QP + (j * 2 + tb) * 2
            A('v_cvt_pk_bf16_f32 %s, %s, %s' % (v(d), v(rr[0]), v(rr[1])))
            A('v_cvt_pk_bf16_f32 %s, %s, %s' % (v(d + 1), v(rr[2]), v(rr[3])))
            A('buffer_store_dwordx2 %s, v9, s[24:27], %s offen offset:%d' % (v(d, 2), s(5 + j), tb * 256), 'st')
    A.wait(lg='kvw')
    A('s_barrier')
    A('s_cmp_ge_u32 s28, 2')
    A('s_cbranch_scc1 k1_fin')
    A('s_mul_i32 s5, s28, 1280')
    A('s_add_u32 s5, s5, %d' % LDS_KV)
    A('v_add_u32 v60, s5, v5')
    A('v_add_u32 v63, s5, v61')
    for w in range(4):
        A('ds_read_b128 %s, v60 offset:%d' % (v(80 + 4 * w, 4), w * 2560), 'kvr')
        A('ds_read_b32 %s, v63 offset:%d' % (v(96 + w), w * 2560 + 1024), 'kvr')
    A('s_lshl_b32 s5, s31, 1')
    A('s_add_u32 s5, s5, s28')
    A('s_lshl_b32 s5, s5, 4')
    A('s_add_u32 s5, s5, s30')
    A('s_lshl_b32 s6, s5, 10')
    A('s_add_u32 s6, s6, %d' % WS_KVP)
    A('s_lshl_b32 s7, s5, 6')
    A('s_add_u32 s7, s7, %d' % WS_ZP)
    A.wait(lg='kvr')
    for r in range(4):
        A('v_add_f32 %s, %s, %s' % (v(80 + r), v(80 + r), v(84 + r)))
        A('v_add_f32 %s, %s, %s' % (v(88 + r), v(88 + r), v(92 + r)))
    A('v_add_f32 v96, v96, v97')
    A('v_add_f32 v98, v98, v99')
    for r in range(4):
        A('v_add_f32 %s, %s, %s' % (v(80 + r), v(80 + r), v(88 + r)))
    A('v_add_f32 v96, v96, v98')
    A('buffer_store_dwordx4 v[80:83], v5, s[24:27], s6 offen', 'st')
    A('s_mov_b64 exec, 0xffff')
    A('buffer_store_dword v96, v61, s[24:27], s7 offen', 'st')
    A.label('k1_fin')
    dump_stamps(A, 0, 24)
    A.label('k1_end')
    A('s_endpgm')
    return dict(name='k1_kernel', vgpr=160, agpr=128, lds=LDS_KV + 4 * 2560)


def gemm_core(A, *, n_w, n_d, wstride, x_is_a, SXsrd, SWsrd, SPsrd, mid=None):
    D = CFG['D']
    N = n_w + n_d
    ACC = 48
    WFB = [16, 32]
    PB = 16 * D

    def wd(j):
        out = []
        if j >= N:
            return out
        if j < n_w:
            pre = ['s_add_u32 m0, s42, %d' % ((j % D) * 4096)]
            if j > 0:
                pre.append('s_add_u32 s41, s41, %d' % (128 * wstride))
            for q in range(4):
                out.append((pre if q == 0 else [],
                            'buffer_load_dwordx4 %s, %s, s41 offen offset:%d%s lds' % (v(8 + q), s(SWsrd, 4), q * 1024, NT()),
                            ('w', j)))
        else:
            jj = j - n_w
            pre = ['s_add_u32 s43, s43, 16384'] if jj > 0 else []
            for st in range(2):
                for b in range(2):
                    out.append((pre if (st == 0 and b == 0) else [],
                                'buffer_load_dwordx4 %s, %s, %s, s43 offen offset:%d'
                                % (a(PB + jj * 16 + (st * 2 + b) * 4, 4), v(14 + b), s(SPsrd, 4), st * 2048),
                                ('w', j)))
        return out

    def xl(j):
        out = []
        if j >= N or j < 0:
            return out
        pre = ['s_add_u32 s40, s40, 16384'] if j > 0 else []
        for st in range(2):
            for b in range(2):
                out.append((pre if (st == 0 and b == 0) else [],
                            'buffer_load_dwordx4 %s, %s, %s, s40 offen offset:%d'
                            % (a((j % D) * 16 + (st * 2 + b) * 4, 4), v(6 + b), s(SXsrd, 4), st * 2048),
                            ('x', j)))
        return out

    def emit(item):
        pre, ins, tag = item
        for p in pre:
            A(p)
        A(ins, tag)

    def reads(j):
        out = []
        if j >= n_w:
            return out
        for st in range(2):
            for b in range(2):
                for sec in range(2):
                    out.append(('ds_read_b64_tr_b16 %s, %s offset:%d'
                                % (v(WFB[j % 2] + (st * 2 + b) * 4 + sec * 2, 2), v(12 + b),
                                   (j % D) * 4096 + st * 2048 + sec * 512), ('r', j)))
        return out

    for it in wd(0):
        emit(it)
    for j in range(1, D):
        for it in wd(j):
            emit(it)
        for it in xl(j - 1):
            emit(it)
    yield 'prologue'
    stamp(A)
    A.wait(vm=[('w', 0)])
    stamp(A)
    for ins, tag in reads(0):
        A(ins, tag)
    for i in range(N):
        if i == n_w and mid is not None:
            mid()
        A.wait(vm=[('x', i), ('w', i + 1), ('w', i)], lg=[('r', i)])
        if i % 2 == 0:
            stamp(A)
        loads = wd(i + D) + xl(i + D - 1)
        rd = reads(i + 1)
        m = 0
        for st in range(2):
            for xb in range(2):
                for wb in range(2):
                    acc = v(ACC + (xb * 2 + wb) * 16, 16)
                    xf = a((i % D) * 16 + (st * 2 + xb) * 4, 4)
                    if i < n_w:
                        wf = v(WFB[i % 2] + (st * 2 + wb) * 4, 4)
                    else:
                        wf = a(PB + (i - n_w) * 16 + (st * 2 + wb) * 4, 4)
                    cin = '0' if (i == 0 and st == 0) else acc
                    if x_is_a:
                        A('v_mfma_f32_32x32x16_bf16 %s, %s, %s, %s' % (acc, xf, wf, cin))
                    else:
                        A('v_mfma_f32_32x32x16_bf16 %s, %s, %s, %s' % (acc, wf, xf, cin))
                    for _ in range(2):
                        if rd:
                            ins, tag = rd.pop(0)
                            A(ins, tag)
                    if loads:
                        emit(loads.pop(0))
                    m += 1
        assert not loads and not rd
    stamp(A)
    A('v_add_u32 v16, s42, v5')
    for q in range(1, 4):
        A('s_xor_b32 s5, s28, %d' % q)
        A('s_mul_i32 s5, s5, %d' % (D * 4096))
        A('v_add_u32 %s, s5, v5' % v(16 + q))
    for q in range(1, 4):
        for c in range(4):
            A('ds_write_b128 v16, %s offset:%d' % (v(ACC + q * 16 + c * 4, 4), (q - 1) * 4096 + c * 1024), 'rw')
    A.wait(lg='rw')
    A('s_barrier')
    stamp(A)
    for q in range(1, 4):
        for c in range(4):
            A('ds_read_b128 %s, %s offset:%d' % (v(ACC + q * 16 + c * 4, 4), v(16 + q), (q - 1) * 4096 + c * 1024),
              ('rr', q))
    A.wait(lg=[('rr', 2)])
    for r in range(16):
        A('v_add_f32 %s, %s, %s' % (v(ACC + 16 + r), v(ACC + 16 + r), v(ACC + 32 + r)))
    A.wait(lg=[('rr', 3)])
    for r in range(16):
        A('v_add_f32 %s, %s, %s' % (v(ACC + r), v(ACC + r), v(ACC + 48 + r)))
    for r in range(16):
        A('v_add_f32 %s, %s, %s' % (v(ACC + r), v(ACC + r), v(ACC + 16 + r)))
    yield 'done'


def gemm_addr_setup(A, wstride, perm_x, perm_w):
    D = CFG['D']
    A('v_lshlrev_b32 v5, 4, v2')
    A('v_and_b32 v3, 31, v2')
    A('v_lshrrev_b32 v4, 5, v2')
    if perm_x:
        A('v_bfe_u32 v6, v3, 2, 1')
        A('v_lshlrev_b32 v6, 4, v6')
        A('v_and_b32 v7, 3, v3')
        A('v_add_u32 v6, v6, v7')
        A('v_lshrrev_b32 v7, 3, v3')
        A('v_lshl_add_u32 v6, v7, 2, v6')
        A('v_lshlrev_b32 v6, 4, v6')
    else:
        A('v_lshlrev_b32 v6, 4, v3')
    A('v_lshl_add_u32 v6, v4, 10, v6')
    A('s_lshr_b32 s5, s28, 1')
    A('s_lshl_b32 s5, s5, 9')
    A('v_or_b32 v6, s5, v6')
    A('v_xor_b32 v7, 512, v6')
    A('v_lshrrev_b32 v9, 3, v2')
    A('v_mul_u32_u24 v8, %d, v9' % wstride)
    A('v_bfe_u32 v9, v2, 4, 1')
    A('v_lshlrev_b32 v9, 2, v9')
    A('v_and_b32 v10, 7, v2')
    A('v_xor_b32 v9, v9, v10')
    A('v_lshl_add_u32 v8, v9, 4, v8')
    for q in range(1, 4):
        A('v_add_u32 %s, %d, v8' % (v(8 + q), q * (8 * wstride - 1024)))
    A('s_mul_i32 s42, s28, %d' % (D * 4096))


def gemm_tr_setup(A, perm_w):
    A('v_bfe_u32 v16, v2, 2, 2')
    A('v_lshl_add_u32 v16, v4, 3, v16')
    A('v_lshlrev_b32 v12, 7, v16')
    A('v_bfe_u32 v16, v2, 3, 1')
    A('v_lshl_add_u32 v12, v16, 6, v12')
    A('v_bfe_u32 v16, v2, 4, 1')
    if perm_w:
        A('v_lshl_add_u32 v12, v16, 4, v12')
        A('v_and_b32 v16, 1, v2')
        A('v_lshl_add_u32 v12, v16, 5, v12')
        A('v_bfe_u32 v16, v2, 1, 1')
        A('v_lshl_add_u32 v12, v16, 3, v12')
    else:
        A('v_lshl_add_u32 v12, v16, 5, v12')
        A('v_and_b32 v16, 3, v2')
        A('v_lshl_add_u32 v12, v16, 3, v12')
    A('s_and_b32 s5, s28, 1')
    A('s_lshl_b32 s5, s5, 6')
    A('v_xor_b32 v12, s5, v12')
    A('v_add_u32 v12, s42, v12')
    A('v_xor_b32 v13, 64, v12')


def gen_k2(A):
    D = CFG['D']
    header(A, 'k2_kernel')
    SWS, SW1, SB1, SWO = 12, 16, 20, 24
    ACC = 48
    A('s_cmp_ge_u32 s2, 256')
    A('s_cbranch_scc1 k2_end')
    A('s_load_dwordx2 s[12:13], s[0:1], 88')
    A('s_load_dwordx2 s[16:17], s[0:1], 32')
    A('s_load_dwordx2 s[20:21], s[0:1], 40')
    A('s_load_dwordx2 s[24:25], s[0:1], 16')
    A('v_lshrrev_b32 v1, 6, v0')
    A('v_and_b32 v2, 63, v0')
    A('v_readfirstlane_b32 s28, v1')
    srd(A, SWS, WS_SIZE)
    srd(A, SW1, 2048 * 1792 * 2)
    srd(A, SB1, 1792 * 2)
    srd(A, SWO, 512 * 512 * 2)
    A('s_and_b32 s3, s2, 7')
    A('s_lshr_b32 s4, s2, 3')
    A('s_cmp_ge_u32 s4, 28')
    A('s_cbranch_scc1 k2_spare')
    A('s_and_b32 s5, s3, 1')
    A('s_lshl_b32 s5, s5, 2')
    A('s_and_b32 s6, s4, 3')
    A('s_add_u32 s30, s5, s6')
    A('s_lshr_b32 s5, s3, 1')
    A('s_mul_i32 s5, s5, 7')
    A('s_lshr_b32 s6, s4, 2')
    A('s_add_u32 s31, s5, s6')
    gemm_addr_setup(A, 3584, perm_x=False, perm_w=True)
    A('s_lshl_b32 s40, s30, 18')
    A('s_lshl_b32 s5, s28, 12')
    A('s_add_u32 s40, s40, s5')
    if WS_HT:
        A('s_add_u32 s40, s40, %d' % WS_HT)
    A('s_mul_i32 s41, s28, %d' % (32 * 3584))
    A('s_lshl_b32 s5, s31, 7')
    A('s_add_u32 s41, s41, s5')
    A('v_lshlrev_b32 v14, 5, v4')
    A('s_and_b32 s6, s28, 1')
    A('s_lshl_b32 s6, s6, 6')
    A('s_add_u32 s44, s5, s6')
    A.wait_all(vm=False)
    stamp(A)
    core = gemm_core(A, n_w=16, n_d=0, wstride=3584, x_is_a=False, SXsrd=SWS, SWsrd=SW1, SPsrd=SWS)
    next(core)
    BI = 112
    A('buffer_load_dwordx4 %s, v14, s[20:23], s44 offen' % v(BI, 4), 'b')
    A('buffer_load_dwordx4 %s, v14, s[20:23], s44 offen offset:16' % v(BI + 4, 4), 'b')
    gemm_tr_setup(A, perm_w=True)
    next(core)
    A.wait(vm='b')
    BF = 16
    unpack(A, BI, 8, BF)
    T = 64
    c2 = -2.0 * math.sqrt(2.0 / math.pi) * LOG2E
    A('v_mov_b32 v32, %s' % f32(c2))
    for r in range(16):
        A('v_add_f32 %s, %s, %s' % (v(ACC + r), v(ACC + r), v(BF + r)))
    for r in range(16):
        A('v_mul_f32 %s, %s, %s' % (v(T + r), v(ACC + r), v(ACC + r)))
    for r in range(16):
        A('v_fmamk_f32 %s, %s, %s, v32' % (v(T + r), v(T + r), f32(c2 * 0.044715)))
    for r in range(16):
        A('v_mul_f32 %s, %s, %s' % (v(T + r), v(T + r), v(ACC + r)))
    for r in range(16):
        A('v_exp_f32 %s, %s' % (v(T + r), v(T + r)))
    for r in range(16):
        A('v_add_f32 %s, 1.0, %s' % (v(T + r), v(T + r)))
    for r in range(16):
        A('v_rcp_f32 %s, %s' % (v(T + r), v(T + r)))
    for r in range(16):
        A('v_mul_f32 %s, %s, %s' % (v(T + r), v(T + r), v(ACC + r)))
    for q in range(8):
        A('v_cvt_pk_bf16_f32 %s, %s, %s' % (v(80 + q), v(T + 2 * q), v(T + 2 * q + 1)))
    A('v_lshlrev_b32 v14, 4, v3')
    A('v_lshl_add_u32 v14, v4, 11, v14')
    A('s_mul_i32 s5, s30, %d' % UM_TILE)
    A('s_lshl_b32 s6, s31, 13')
    A('s_add_u32 s5, s5, s6')
    A('s_and_b32 s6, s28, 1')
    A('s_lshl_b32 s6, s6, 12')
    A('s_add_u32 s5, s5, s6')
    A('s_lshr_b32 s6, s28, 1')
    A('s_lshl_b32 s6, s6, 9')
    A('s_add_u32 s5, s5, s6')
    A('s_add_u32 s5, s5, %d' % WS_UM)
    A('buffer_store_dwordx4 v[80:83], v14, s[12:15], s5 offen', 'st')
    A('buffer_store_dwordx4 v[84:87], v14, s[12:15], s5 offen offset:1024', 'st')
    dump_stamps(A, 1, 12)
    A('s_endpgm')
    STAMP['n'] = 2
    A.label('k2_spare')
    A.reset_counters()
    A.smem = True
    A('s_lshl_b32 s30, s3, 2')
    A('s_add_u32 s30, s30, s4')
    A('s_sub_u32 s30, s30, 28')
    A('v_lshlrev_b32 v5, 4, v2')
    A('v_lshlrev_b32 v6, 2, v2')
    A('v_lshlrev_b32 v7, 4, v0')
    A('v_lshlrev_b32 v8, 2, v0')
    A('v_and_b32 v3, 15, v2')
    A('v_lshrrev_b32 v4, 4, v2')
    A('v_lshlrev_b32 v9, 10, v4')
    A('v_lshl_add_u32 v9, v3, 4, v9')
    A('s_lshl_b32 s31, s30, 14')
    A('s_add_u32 s32, s31, %d' % WS_KVP)
    A('s_lshl_b32 s33, s30, 10')
    A('s_add_u32 s33, s33, %d' % WS_ZP)
    A('s_lshl_b32 s34, s28, 8')
    A('s_add_u32 s34, s34, s31')
    A('s_lshl_b32 s35, s28, 12')
    A('s_lshl_b32 s36, s30, 16')
    A('s_add_u32 s36, s36, %d' % WS_PQ)
    A.wait_all(vm=False)
    ZR, KVR, PQR, GR = 10, 16, 80, 144
    for i in range(4):
        A('buffer_load_dword %s, v6, s[12:15], s33 offen offset:%d' % (v(ZR + i), i * 256), 'z')
    for i in range(16):
        if i % 4 == 0 and i:
            A('s_add_u32 s32, s32, 4096')
        A('buffer_load_dwordx4 %s, v5, s[12:15], s32 offen offset:%d' % (v(KVR + 4 * i, 4), (i % 4) * 1024), 'kv')
    for q in range(4):
        A('s_add_u32 m0, s35, %d' % (q * 1024))
        A('s_add_u32 s37, s34, %d' % (q * 4096))
        A('buffer_load_dwordx4 v9, s[24:27], s37 offen lds', 'wo')
    A('s_mov_b32 s38, %d' % WS_G)
    for i in range(8):
        A('s_add_u32 s37, s36, %d' % (i * 4096))
        A('s_add_u32 s39, s36, %d' % (i * 4096 + 32768))
        A('buffer_load_dwordx4 %s, v7, s[12:15], s37 offen' % v(PQR + 8 * i, 4), ('pq', i))
        A('buffer_load_dwordx4 %s, v7, s[12:15], s39 offen' % v(PQR + 8 * i + 4, 4), ('pq', i))
        if i == 4:
            A('s_add_u32 s38, s38, 4096')
        A('buffer_load_dword %s, v8, s[12:15], s38 offen offset:%d' % (v(GR + i), (i % 4) * 1024), ('pq', i))
    A.wait(vm='z')
    A('v_add_f32 v10, v10, v11')
    A('v_add_f32 v12, v12, v13')
    A('v_add_f32 v10, v10, v12')
    cross_rows(A, [10], [11])
    ZS = 48
    for c in range(16):
        A('v_readlane_b32 %s, v10, %d' % (s(ZS + c), c))
    A.wait(vm='kv')
    n = 16
    while n > 1:
        n //= 2
        for i in range(n):
            for r in range(4):
                A('v_add_f32 %s, %s, %s' % (v(KVR + 4 * i + r), v(KVR + 4 * i + r), v(KVR + 4 * (i + n) + r)))
    A('v_cvt_pk_bf16_f32 v12, %s, %s' % (v(KVR), v(KVR + 1)))
    A('v_cvt_pk_bf16_f32 v13, %s, %s' % (v(KVR + 2), v(KVR + 3)))
    A('v_lshrrev_b32 v14, 2, v2')
    A('v_lshlrev_b32 v14, 8, v14')
    A('v_and_b32 v15, 3, v2')
    A('v_lshl_add_u32 v14, v15, 3, v14')
    A('v_add_u32 v14, s35, v14')
    A.wait(vm='wo')
    for nb in range(8):
        A('ds_read_b64_tr_b16 %s, v14 offset:%d' % (v(20 + 2 * nb, 2), nb * 32), 'wt')
    A.wait(lg='wt')
    for nb in range(8):
        A('v_mfma_f32_16x16x16_bf16 %s, v[12:13], %s, 0' % (v(40 + 4 * nb, 4), v(20 + 2 * nb, 2)))
    A('v_lshrrev_b32 v14, 1, v4')
    A('v_lshlrev_b32 v14, 10, v14')
    A('v_lshl_add_u32 v14, v3, 4, v14')
    A('v_and_b32 v15, 1, v4')
    A('v_lshl_add_u32 v14, v15, 3, v14')
    A('s_mul_i32 s5, s28, %d' % (2 * UM_TILE))
    A('s_lshl_b32 s6, s30, 11')
    A('s_add_u32 s5, s5, s6')
    A('s_add_u32 s5, s5, %d' % (WS_UM + 224 * 1024))
    A('s_add_u32 s6, s5, %d' % UM_TILE)
    for nb in range(8):
        A('v_cvt_pk_bf16_f32 %s, %s, %s' % (v(20 + 2 * nb), v(40 + 4 * nb), v(41 + 4 * nb)))
        A('v_cvt_pk_bf16_f32 %s, %s, %s' % (v(21 + 2 * nb), v(42 + 4 * nb), v(43 + 4 * nb)))
        A('buffer_store_dwordx2 %s, v14, s[12:15], %s offen offset:%d'
          % (v(20 + 2 * nb, 2), s(5 + nb // 4), (nb % 4) * 256), 'st')
    A('s_lshl_b32 s5, s28, 16')
    A('s_lshl_b32 s6, s30, 11')
    A('s_add_u32 s5, s5, s6')
    A('s_add_u32 s5, s5, %d' % WS_PP)
    for i in range(8):
        U = 40 + (i % 2) * 20
        A.wait(vm=[('pq', i)])
        unpack(A, PQR + 8 * i, 8, U)
        A('v_mov_b32 %s, %s' % (v(U + 16), f32(1e-6)))
        A('v_mul_f32 %s, %s, %s' % (v(U + 17), s(ZS + 1), v(U + 1)))
        A('v_fmac_f32 %s, %s, %s' % (v(U + 16), s(ZS), v(U)))
        for c in range(2, 16):
            A('v_fmac_f32 %s, %s, %s' % (v(U + 16 + c % 2), s(ZS + c), v(U + c)))
        A('v_add_f32 %s, %s, %s' % (v(U + 16), v(U + 16), v(U + 17)))
        A('v_rcp_f32 %s, %s' % (v(U + 16), v(U + 16)))
        A('v_mul_f32 %s, %s, %s' % (v(U + 16), v(U + 16), v(GR + i)))
        for c in range(16):
            A('v_mul_f32 %s, %s, %s' % (v(U + c), v(U + c), v(U + 16)))
        for q in range(8):
            A('v_cvt_pk_bf16_f32 %s, %s, %s' % (v(PQR + 8 * i + q), v(U + 2 * q), v(U + 2 * q + 1)))
        A('buffer_store_dwordx4 %s, v5, s[12:15], s5 offen' % v(PQR + 8 * i, 4), 'st')
        A('buffer_store_dwordx4 %s, v5, s[12:15], s5 offen offset:1024' % v(PQR + 8 * i + 4, 4), 'st')
        if i < 7:
            A('s_add_u32 s5, s5, 0x40000')
    dump_stamps(A, 1, 12)
    A.label('k2_end')
    A('s_endpgm')
    return dict(name='k2_kernel', vgpr=152, agpr=16 * D, lds=max(4 * D * 4096, 84 * 1024))


def gen_k3(A):
    D = CFG['D']
    header(A, 'k3_kernel')
    SWS, SW2, SB2, SOUT = 12, 16, 20, 24
    ACC = 48
    A('s_cmp_ge_u32 s2, 256')
    A('s_cbranch_scc1 k3_end')
    A('s_load_dwordx2 s[12:13], s[0:1], 88')
    A('s_load_dwordx2 s[16:17], s[0:1], 48')
    A('s_load_dwordx2 s[20:21], s[0:1], 56')
    A('s_load_dwordx2 s[24:25], s[0:1], 72')
    A('v_lshrrev_b32 v1, 6, v0')
    A('v_and_b32 v2, 63, v0')
    A('v_readfirstlane_b32 s28, v1')
    srd(A, SWS, WS_SIZE)
    srd(A, SW2, 2048 * 1792 * 2)
    srd(A, SB2, 2048 * 2)
    srd(A, SOUT, 2048 * 512 * 2)
    A('s_and_b32 s3, s2, 7')
    A('s_lshr_b32 s4, s2, 3')
    A('s_and_b32 s30, s4, 7')
    A('s_lshl_b32 s5, s3, 2')
    A('s_lshr_b32 s6, s4, 3')
    A('s_add_u32 s31, s5, s6')
    gemm_addr_setup(A, 4096, perm_x=True, perm_w=False)
    A('s_mul_i32 s40, s30, %d' % UM_TILE)
    A('s_lshl_b32 s5, s28, 12')
    A('s_add_u32 s40, s40, s5')
    A('s_add_u32 s40, s40, %d' % WS_UM)
    A('s_lshl_b32 s43, s31, 16')
    A('s_add_u32 s43, s43, s5')
    A('s_add_u32 s43, s43, %d' % WS_PP)
    A('s_lshl_b32 s41, s28, 17')
    A('s_lshl_b32 s5, s31, 7')
    A('s_add_u32 s41, s41, s5')
    A('v_lshlrev_b32 v14, 4, v3')
    A('v_lshl_add_u32 v14, v4, 10, v14')
    A('s_and_b32 s6, s28, 1')
    A('s_lshl_b32 s7, s6, 9')
    A('v_or_b32 v14, s7, v14')
    A('v_xor_b32 v15, 512, v14')
    A('s_lshl_b32 s7, s6, 5')
    A('v_or_b32 v112, s7, v3')
    A('v_lshlrev_b32 v113, 2, v112')
    A('v_xor_b32 v114, 128, v113')
    A('v_lshlrev_b32 v115, 1, v112')
    A('s_lshl_b32 s44, s31, 8')
    A('s_add_u32 s44, s44, %d' % WS_G)
    A.wait_all(vm=False)
    stamp(A)

    def mid():
        A.wait(vm='g')
        A('v_sub_f32 v116, 1.0, v116')
        A('v_sub_f32 v117, 1.0, v117')
        for q in range(4):
            for r in range(16):
                A('v_mul_f32 %s, %s, %s' % (v(ACC + q * 16 + r), v(ACC + q * 16 + r), v(116 + (q & 1))))

    core = gemm_core(A, n_w=14, n_d=4, wstride=4096, x_is_a=True, SXsrd=SWS, SWsrd=SW2, SPsrd=SWS, mid=mid)
    next(core)
    A('buffer_load_dword v116, v113, s[12:15], s44 offen', 'g')
    A('buffer_load_dword v117, v114, s[12:15], s44 offen', 'g')
    A('buffer_load_ushort v118, v115, s[20:23], s5 offen', 'g')
    gemm_tr_setup(A, perm_w=False)
    next(core)
    A('v_lshlrev_b32 v118, 16, v118')
    A('v_mul_f32 v118, v118, v116')
    for r in range(16):
        A('v_add_f32 %s, %s, v118' % (v(ACC + r), v(ACC + r)))
    for q in range(8):
        A('v_cvt_pk_bf16_f32 %s, %s, %s' % (v(80 + q), v(ACC + 2 * q), v(ACC + 2 * q + 1)))
    A('v_lshlrev_b32 v14, 10, v112')
    A('v_lshl_add_u32 v14, v4, 5, v14')
    A('s_lshl_b32 s5, s31, 16')
    A('s_lshl_b32 s6, s30, 7')
    A('s_add_u32 s5, s5, s6')
    A('s_lshr_b32 s6, s28, 1')
    A('s_lshl_b32 s6, s6, 6')
    A('s_add_u32 s5, s5, s6')
    A('buffer_store_dwordx4 v[80:83], v14, s[24:27], s5 offen', 'st')
    A('buffer_store_dwordx4 v[84:87], v14, s[24:27], s5 offen offset:16', 'st')
    dump_stamps(A, 2, 12)
    A.label('k3_end')
    A('s_endpgm')
    return dict(name='k3_kernel', vgpr=120, agpr=16 * D + 64, lds=max(4 * D * 4096, 84 * 1024))


def build(out_path):
    A = Asm()
    infos = [gen_k1(A), gen_k2(A), gen_k3(A)]
    ref = open(REF).read().split('\n')
    head = [l for l in ref if l.startswith(';') and '@launch' not in l and 'Override launch' not in l
            and 'grid=ceil' not in l]
    txt = '\n'.join(head) + '\n'
    for k in infos:
        txt += '; @launch kernel=%s grid=(256,1,1) block=(256,1,1) lds=%d\n' % (k['name'], k['lds'])
    txt += '.amdgcn_target "amdgcn-amd-amdhsa--gfx950"\n.text\n'
    txt += A.text()
    txt += '.section .rodata,"a"\n'
    for k in infos:
        acc_off = (k['vgpr'] + 3) // 4 * 4
        txt += '''.p2align 6
.amdhsa_kernel %s
  .amdhsa_next_free_vgpr %d
  .amdhsa_next_free_sgpr 102
  .amdhsa_accum_offset %d
  .amdhsa_group_segment_fixed_size 0
  .amdhsa_kernarg_size 96
  .amdhsa_user_sgpr_count 2
  .amdhsa_user_sgpr_kernarg_segment_ptr 1
  .amdhsa_system_sgpr_workgroup_id_x 1
.end_amdhsa_kernel
''' % (k['name'], acc_off + k['agpr'], acc_off)
    open(out_path, 'w').write(txt)


if __name__ == '__main__':
    out = sys.argv[1] if len(sys.argv) > 1 else 'cdna_kernels/%s.s' % NAME
    for kv in sys.argv[2:]:
        k, val = kv.split('=')
        CFG[k] = int(val)
    build(out)
```

```python
import re
import struct

REG_RE = re.compile(r'^(-?)(?:abs\()?([vas])(?:(\d+)|\[(\d+):(\d+)\])\)?$')
TRANS = ('v_exp_f32', 'v_rcp_f32', 'v_rsq_f32', 'v_log_f32', 'v_sqrt_f32', 'v_sin_f32', 'v_cos_f32')


def f32(x):
    return '0x%08x' % struct.unpack('<I', struct.pack('<f', x))[0]


def regs_of(op):
    op = op.strip()
    if op in ('vcc', 'vcc_lo', 'vcc_hi'):
        return {('vcc', 0)}
    if op in ('exec', 'exec_lo', 'exec_hi'):
        return {('exec', 0)}
    if op == 'm0':
        return {('m0', 0)}
    m = REG_RE.match(op)
    if not m:
        return set()
    k = m.group(2)
    if m.group(3) is not None:
        return {(k, int(m.group(3)))}
    return {(k, i) for i in range(int(m.group(4)), int(m.group(5)) + 1)}


def split_ops(s):
    out, depth, cur = [], 0, ''
    for ch in s:
        if ch in '[(':
            depth += 1
        if ch in '])':
            depth -= 1
        if ch == ',' and depth == 0:
            out.append(cur.strip())
            cur = ''
        else:
            cur += ch
    if cur.strip():
        out.append(cur.strip())
    return out


class Ins:
    def __init__(self, text):
        self.text = text
        t = text.split(';')[0].strip()
        self.label = t.endswith(':')
        self.directive = t.startswith('.')
        self.kind = 'other'
        self.w = set()
        self.r = set()
        self.srcc = set()
        self.ab = set()
        self.passes = 0
        self.dpp = False
        self.states = 1
        self.store_data = set()
        self.mn = ''
        if self.label or self.directive or not t:
            self.states = 0
            return
        parts = t.split(None, 1)
        mn = parts[0]
        self.mn = mn
        rest = parts[1] if len(parts) > 1 else ''
        ops = split_ops(rest)
        mods = ''
        if ops:
            last = ops[-1].split(None, 1)
            ops[-1] = last[0]
            mods = last[1] if len(last) > 1 else ''
        self.mods = mods
        R = [regs_of(o) for o in ops]
        allr = lambda xs: set().union(*xs) if xs else set()
        if mn.startswith('v_mfma'):
            self.kind = 'mfma'
            self.w = R[0]
            self.ab = R[1] | R[2]
            self.srcc = R[3]
            self.r = self.ab | self.srcc
            self.passes = 8 if '32x32x16' in mn else 4
        elif mn.startswith('v_'):
            self.kind = 'valu'
            if 'quad_perm' in mods or 'row_' in mods or 'wave_' in mods or mn.endswith('_dpp'):
                self.dpp = True
            if mn.startswith('v_permlane'):
                self.w = R[0] | R[1]
                self.r = R[0] | R[1]
            elif mn.startswith('v_cmp'):
                self.w = R[0]
                self.r = allr(R[1:])
            elif '_co_' in mn:
                self.w = R[0] | R[1]
                self.r = allr(R[2:])
            else:
                self.w = R[0]
                self.r = allr(R[1:])
                if mn.startswith(('v_fmac', 'v_dot2c', 'v_writelane')) or self.dpp:
                    self.r |= R[0]
        elif mn.startswith('ds_'):
            self.kind = 'ds'
            if mn.startswith(('ds_read', 'ds_bpermute', 'ds_permute', 'ds_swizzle')):
                self.w = R[0]
                self.r = allr(R[1:])
            else:
                self.r = allr(R)
            if 'addtid' in mn:
                self.r |= {('m0', 0)}
        elif mn.startswith(('buffer_', 'global_')):
            self.kind = 'vmem'
            lds = bool(re.search(r'\blds\b', mods)) or '_lds_' in mn
            self.lds_dma = lds
            if mn in ('buffer_inv', 'buffer_wbl2'):
                pass
            elif 'load' in mn and not lds:
                self.w = R[0]
                self.r = allr(R[1:])
            elif lds:
                self.r = allr(R) | {('m0', 0)}
            else:
                self.r = allr(R)
                if 'atomic' in mn and re.search(r'\bsc0\b', mods):
                    self.w = R[0]
                if mn.startswith('buffer_store') and ('x4' in mn or 'x3' in mn):
                    self.store_data = R[0]
                if mn.startswith('global_store') and ('x4' in mn or 'x3' in mn):
                    self.store_data = R[1]
        elif mn.startswith('s_'):
            self.kind = 'salu'
            if mn == 's_nop':
                self.states = int(ops[0], 0) + 1
            elif mn.startswith(('s_waitcnt', 's_barrier', 's_branch', 's_cbranch', 's_endpgm', 's_sleep',
                                's_setprio', 's_cmp', 's_bitcmp')):
                self.r = allr(R)
            else:
                self.w = R[0] if R else set()
                self.r = allr(R[1:])
                if 'saveexec' in mn:
                    self.w |= {('exec', 0)}


def need(p, c):
    n = 0
    vw = {x for x in p.w if x[0] in 'va' and x[0] != 'vcc'}
    vw = {x for x in p.w if x[0] in ('v', 'a')}
    sw = {x for x in p.w if x[0] in ('s', 'vcc')}
    if p.kind == 'valu':
        if c.kind == 'mfma' and vw & c.r:
            n = max(n, 2)
        if sw:
            if c.kind == 'vmem' and sw & c.r:
                n = max(n, 5)
            if c.kind in ('valu', 'mfma') and sw & c.r:
                n = max(n, 4 if c.mn.startswith(('v_readlane', 'v_writelane')) else 2)
            if c.kind == 'salu' and sw & c.r:
                n = max(n, 1)
        if p.mn.startswith(TRANS) and vw & c.r:
            n = max(n, 1)
        if c.kind == 'valu' and vw & c.r:
            if c.dpp or c.mn.startswith('v_permlane'):
                n = max(n, 2)
            if c.mn.startswith(('v_readlane', 'v_readfirstlane')):
                n = max(n, 1)
        if ('exec', 0) in p.w:
            n = max(n, 5)
    if p.kind == 'mfma':
        big = {4: 8, 8: 12}[p.passes]
        if c.kind == 'mfma':
            if p.w & c.ab:
                n = max(n, big)
            if p.w & c.srcc and not (p.w == c.srcc and p.passes == c.passes):
                n = max(n, p.passes + 2)
            if p.w & c.w and not (p.w == c.w and p.w == c.srcc):
                n = max(n, big)
        elif c.kind in ('valu', 'vmem', 'ds'):
            if p.w & (c.r | c.w):
                n = max(n, big)
            if p.srcc & c.w:
                n = max(n, p.passes - 1)
    if p.kind == 'salu' and ('m0', 0) in p.w and ('m0', 0) in c.r and c.kind != 'salu':
        n = max(n, 1)
    if p.store_data and p.store_data & c.w:
        n = max(n, 2)
    return n


class Asm:
    def __init__(self):
        self.ins = []
        self.vm = []
        self.lg = []
        self.smem = False
        self.sprq = []
        self.spr_every = 0
        self.spr_cnt = 0

    def sprinkle(self, items, every):
        self.sprq = list(items)
        self.spr_every = every
        self.spr_cnt = 0

    def flush_sprinkle(self):
        q, self.sprq = self.sprq, []
        for pre, ins, tag in q:
            for p_ in pre:
                self(p_)
            if ins is not None:
                self(ins, tag)

    def raw(self, text):
        self.ins.append(Ins(text))

    def __call__(self, text, tag=None):
        i = Ins(text)
        dist = 0
        req = 0
        for p in reversed(self.ins):
            if dist >= 24:
                break
            k = need(p, i) - dist
            if k > req:
                req = k
            dist += p.states
        while req > 0:
            k = min(req, 16)
            self.ins.append(Ins('s_nop %d' % (k - 1)))
            req -= k
        self.ins.append(i)
        if i.kind == 'vmem':
            self.vm.append(tag)
            assert len(self.vm) <= 63, 'vmcnt overflow'
        elif i.kind == 'ds':
            self.lg.append(tag)
        elif i.mn.startswith(('s_load', 's_memtime', 's_memrealtime', 's_buffer_load')):
            self.smem = True
        if self.sprq and i.kind == 'valu':
            self.spr_cnt += 1
            if self.spr_cnt >= self.spr_every:
                self.spr_cnt = 0
                pre, ins, tg = self.sprq.pop(0)
                q, self.sprq = self.sprq, []
                for p_ in pre:
                    self(p_)
                if ins is not None:
                    self(ins, tg)
                self.sprq = q

    def label(self, name):
        self.ins.append(Ins(name + ':'))

    def comment(self, text):
        self.ins.append(Ins('; ' + text))

    @staticmethod
    def _count(q, tags):
        idx = -1
        for n, t in enumerate(q):
            if t in tags:
                idx = n
        return idx

    def wait(self, vm=(), lg=(), force=False):
        parts = []
        if isinstance(vm, (str, tuple)) and not isinstance(vm, list):
            vm = [vm] if vm != () else []
        if isinstance(lg, (str, tuple)) and not isinstance(lg, list):
            lg = [lg] if lg != () else []
        if vm:
            idx = self._count(self.vm, vm)
            if idx >= 0:
                n = len(self.vm) - 1 - idx
                parts.append('vmcnt(%d)' % n)
                self.vm = self.vm[idx + 1:]
        if lg:
            idx = self._count(self.lg, lg)
            if idx >= 0:
                assert not self.smem
                n = len(self.lg) - 1 - idx
                if n > 15:
                    n = 15
                    idx = len(self.lg) - 1 - 15
                    raise AssertionError('lgkmcnt overflow')
                parts.append('lgkmcnt(%d)' % n)
                self.lg = self.lg[idx + 1:]
        if parts:
            self('s_waitcnt ' + ' '.join(parts))

    def wait_all(self, vm=True, lg=True):
        parts = []
        if vm:
            parts.append('vmcnt(0)')
            self.vm = []
        if lg:
            parts.append('lgkmcnt(0)')
            self.lg = []
            self.smem = False
        self('s_waitcnt ' + ' '.join(parts))

    def reset_counters(self):
        self.vm = []
        self.lg = []
        self.smem = False

    def text(self):
        out = []
        for i in self.ins:
            if i.label or i.directive:
                out.append(i.text)
            else:
                out.append('    ' + i.text)
        return '\n'.join(out) + '\n'


def v(n, k=1):
    return 'v%d' % n if k == 1 else 'v[%d:%d]' % (n, n + k - 1)


def a(n, k=1):
    return 'a%d' % n if k == 1 else 'a[%d:%d]' % (n, n + k - 1)


def s(n, k=1):
    return 's%d' % n if k == 1 else 's[%d:%d]' % (n, n + k - 1)
```

```python
import sys
import math
from asmlib import Asm, f32, v, a, s

NAME = 'gated_mix__linear_attn_block__mixer_token_mlp__prompt'
REF = 'cdna_kernels/%s.s.ref' % NAME

WS_HT = 0x000000
WS_PQ = 0x200000
WS_PP = 0x400000
WS_UM = 0x600000
WS_KVP = 0x880000
WS_ZP = 0x980000
WS_G = 0x990000
WS_SIZE = 0x1000000
UM_TILE = 288 * 1024

LOG2E = 1.4426950408889634

CFG = dict(D=5, PRE1=0, SPR1=1000, T1=2, PF1AT=3, ROT1=1, NT1=1, PF1=3, MAP2=0, R2A=18, R2B=0, WFAR2=0, PF2=3, MAP3=0, R3A=28, R3B=0, WFAR3=0)


def NT():
    return ' nt' if CFG.get('NT') else ''


def srd(A, base, size):
    A('s_mov_b32 %s, 0x%x' % (s(base + 2), size))
    A('s_mov_b32 %s, 0x20000' % s(base + 3))


def phi(A, regs, tmp):
    for r, t in zip(regs, tmp):
        A('v_mul_f32 %s, %s, %s' % (v(t), f32(LOG2E), v(r)))
    for r, t in zip(regs, tmp):
        A('v_exp_f32_e64 %s, %s clamp' % (v(t), v(t)))
        A('v_max_f32 %s, 0, %s' % (v(r), v(r)))
    for r, t in zip(regs, tmp):
        A('v_add_f32 %s, %s, %s' % (v(r), v(r), v(t)))
    for r, t in zip(regs, tmp):
        A('v_add_f32 %s, %s, %s' % (v(r), f32(1e-6), v(r)))


def allreduce(A, regs, tmps):
    for mod in ('quad_perm:[1,0,3,2]', 'quad_perm:[2,3,0,1]', 'row_half_mirror', 'row_mirror'):
        for r in regs:
            A('v_add_f32_dpp %s, %s, %s %s row_mask:0xf bank_mask:0xf' % (v(r), v(r), v(r), mod))
    cross_rows(A, regs, tmps)


def cross_rows(A, regs, tmps):
    for ins in ('v_permlane16_swap_b32', 'v_permlane32_swap_b32'):
        for r, t in zip(regs, tmps):
            A('v_mov_b32 %s, %s' % (v(t), v(r)))
        for r, t in zip(regs, tmps):
            A('%s %s, %s' % (ins, v(r), v(t)))
        for r, t in zip(regs, tmps):
            A('v_add_f32 %s, %s, %s' % (v(r), v(r), v(t)))


def unpack(A, src, n, dst):
    for i in range(n):
        A('v_lshlrev_b32 %s, 16, %s' % (v(dst + 2 * i), v(src + i)))
        A('v_and_b32 %s, 0xffff0000, %s' % (v(dst + 2 * i + 1), v(src + i)))


STAMP = {'n': 0}


def stamp(A, real=False):
    if not CFG.get('STAMPS'):
        return
    n = STAMP['n']
    assert n < 19
    A.raw('%s %s' % ('s_memrealtime' if real else 's_memtime', s(64 + 2 * n, 2)))
    STAMP['n'] = n + 1


def dump_stamps(A, kidx, srdws):
    if not CFG.get('STAMPS'):
        return
    stamp(A)
    stamp(A, real=True)
    A('s_mov_b64 exec, -1')
    A('s_waitcnt lgkmcnt(0)')
    A('v_mov_b32 v1, 0')
    for i in range(2 * STAMP['n']):
        A('v_writelane_b32 v1, %s, %d' % (s(64 + i), i))
    A('s_lshl_b32 s5, s2, 2')
    A('s_add_u32 s5, s5, s28')
    A('s_lshl_b32 s5, s5, 8')
    A('s_add_u32 s5, s5, %d' % (0xA00000 + kidx * 0x40000))
    A('v_lshlrev_b32 v2, 2, v2')
    A('buffer_store_dword v1, v2, %s, s5 offen' % s(srdws, 4))


def header(A, name):
    A.raw('.globl %s' % name)
    A.raw('.p2align 8')
    A.raw('.type %s,@function' % name)
    A.label(name)
    A.reset_counters()
    STAMP['n'] = 0
    stamp(A, real=True)
    stamp(A)


def touch(A, dst, vaddr, srd_, soff, mode, off=0, tag='pf'):
    out = []
    o = ' offset:%d' % off if off else ''
    if mode in (1, 3):
        out.append('buffer_load_dword %s, %s, %s, %s offen%s nt' % (v(dst), v(vaddr), s(srd_, 4), soff, o))
    if mode in (2, 3):
        out.append('buffer_load_dword %s, %s, %s, %s offen%s' % (v(dst + 1), v(vaddr), s(srd_, 4), soff, o))
    return out


def gen_k1(A):
    header(A, 'k1_kernel')
    NS = 4
    SLOT = 32768
    LDS_LN = NS * SLOT
    LN_STRIDE = 1088
    SX, SW, SG, SWS = 12, 16, 20, 24
    A('s_cmp_ge_u32 s2, 256')
    A('s_cbranch_scc1 k1_end')
    A('s_load_dwordx2 s[12:13], s[0:1], 0')
    A('s_load_dwordx2 s[16:17], s[0:1], 8')
    A('s_load_dwordx2 s[20:21], s[0:1], 64')
    A('s_load_dwordx2 s[24:25], s[0:1], 88')
    A('s_load_dwordx2 s[44:45], s[0:1], 32')
    A('v_lshrrev_b32 v1, 6, v0')
    A('v_and_b32 v2, 63, v0')
    A('v_readfirstlane_b32 s28, v1')
    srd(A, SX, 2048 * 512 * 2)
    srd(A, SW, 512 * 1536 * 2)
    srd(A, SG, 1024)
    srd(A, SWS, WS_SIZE)
    srd(A, 44, 2048 * 1792 * 2)
    A('s_and_b32 s3, s2, 7')
    A('s_lshr_b32 s4, s2, 3')
    A('s_lshr_b32 s5, s3, 1')
    A('s_lshl_b32 s5, s5, 3')
    A('s_and_b32 s6, s4, 7')
    A('s_add_u32 s30, s5, s6')
    A('s_and_b32 s5, s3, 1')
    A('s_lshl_b32 s5, s5, 2')
    A('s_lshr_b32 s7, s4, 3')
    A('s_add_u32 s31, s5, s7')
    if CFG['ROT1']:
        A('s_lshl_b32 s7, s7, 1')
        A('s_add_u32 s39, s6, s7')
        A('s_and_b32 s39, s39, 7')
    else:
        A('s_mov_b32 s39, 0')
    A('v_and_b32 v3, 15, v2')
    A('v_lshrrev_b32 v4, 4, v2')
    A('v_lshlrev_b32 v5, 4, v2')
    A('v_lshrrev_b32 v10, 3, v2')
    A('v_and_b32 v11, 7, v2')
    A('v_xor_b32 v12, v11, v4')
    A('v_lshlrev_b32 v6, 10, v10')
    A('v_lshl_add_u32 v6, v12, 4, v6')
    A('v_xor_b32 v7, 64, v6')
    A('v_add_u32 v7, 7168, v7')
    A('v_and_b32 v12, 1, v4')
    A('v_lshlrev_b32 v12, 1, v12')
    A('v_xor_b32 v12, v11, v12')
    A('v_mul_u32_u24 v8, 3072, v10')
    A('v_lshl_add_u32 v8, v12, 4, v8')
    A('v_xor_b32 v9, 64, v8')
    A('v_add_u32 v9, %d, v9' % (8 * 3072))
    A('v_min_u32 v12, 2, v4')
    A('v_mul_u32_u24 v13, 3072, v3')
    A('v_lshl_add_u32 v13, v12, 10, v13')
    A('v_and_b32 v12, 1, v4')
    A('v_add_u32 v12, s39, v12')
    A('v_and_b32 v12, 7, v12')
    A('v_lshlrev_b32 v12, 7, v12')
    A('v_lshl_add_u32 v12, v3, 10, v12')
    A('s_lshl_b32 s35, s30, 6')
    A('s_lshl_b32 s6, s31, 3')
    A('s_add_u32 s33, s35, s6')
    A('s_lshl_b32 s6, s28, 1')
    A('s_add_u32 s32, s33, s6')
    A('s_lshl_b32 s32, s32, 10')
    A('s_lshl_b32 s6, s28, 4')
    A('s_add_u32 s34, s35, s6')
    A('s_lshl_b32 s34, s34, 10')
    A('s_mul_i32 s36, s28, %d' % (16 * 3072))
    A('s_lshl_b32 s6, s31, 7')
    A('s_add_u32 s36, s36, s6')
    A('s_lshl_b32 s37, s28, 11')
    A('s_mul_i32 s38, s28, 6144')
    A('s_add_u32 s38, s38, 8192')

    def chunk(c):
        sl = (c % NS) * SLOT
        out = []
        pre = ['s_add_u32 s40, s39, %d' % c, 's_and_b32 s40, s40, 7', 's_mul_i32 s41, s40, %d' % (64 * 3072),
               's_add_u32 s41, s41, s36', 's_lshl_b32 s40, s40, 7', 's_add_u32 s40, s40, s34']
        for j in range(2):
            pre.append('s_add_u32 m0, s38, %d' % (sl + j * 3072))
            for t in range(3):
                out.append((pre, 'buffer_load_dwordx4 %s, s[16:19], s41 offen offset:%d lds' % (v(8 + j), 1024 * t),
                            ('ch', c)))
                pre = []
        pre = ['s_add_u32 m0, s37, %d' % sl]
        for j in range(2):
            out.append((pre, 'buffer_load_dwordx4 %s, s[12:15], s40 offen offset:%d lds' % (v(6 + j), 1024 * j),
                        ('ch', c)))
            pre = []
        return out

    def emit(item):
        pre, ins, tag = item
        for p_ in pre:
            A(p_)
        A(ins, tag)

    A('s_mul_i32 s41, s39, %d' % (64 * 3072))
    A('s_add_u32 s41, s41, s36')
    A.wait_all(vm=False)
    stamp(A)
    LNA, LNB, LNG = 16, 20, 24
    nt1 = ' nt' if CFG['NT1'] == 2 else ''
    A('buffer_load_dwordx4 %s, v5, s[12:15], s32 offen%s' % (v(LNA, 4), nt1), 'ln')
    A('buffer_load_dwordx4 %s, v5, s[12:15], s32 offen offset:1024%s' % (v(LNB, 4), nt1), 'ln')
    A('buffer_load_dwordx4 %s, v5, s[20:23], 0 offen' % v(LNG, 4), 'ln')
    if CFG['NT1']:
        for ins in touch(A, 160, 13, 16, 's41', CFG['T1']) + touch(A, 162, 12, 12, 's34', CFG['T1']):
            A(ins, 'pf')
    PRE = CFG['PRE1']
    for c in range(PRE):
        for it in chunk(c):
            emit(it)
    A('v_lshrrev_b32 v14, 1, v3')
    A('v_xor_b32 v14, v14, v4')
    A('v_lshlrev_b32 v10, 7, v3')
    A('v_lshl_add_u32 v10, v14, 4, v10')
    A('v_xor_b32 v11, 64, v10')
    A('v_add_u32 v12, 0x10000, v10')
    A('v_add_u32 v13, 0x10000, v11')
    A('v_lshrrev_b32 v14, 2, v3')
    A('v_and_b32 v15, 3, v3')
    A('v_mul_u32_u24 v28, 3072, v4')
    A('v_lshl_add_u32 v28, v14, 7, v28')
    A('v_lshl_add_u32 v28, v15, 3, v28')
    A('v_bfe_u32 v29, v2, 3, 2')
    A('v_xor_b32 v29, s28, v29')
    A('v_lshl_add_u32 v28, v29, 5, v28')
    A('v_add_u32 v28, 8192, v28')
    A('v_add_u32 v29, 0x10000, v28')
    stamp(A)
    A.wait(vm='ln')
    stamp(A)
    A.sprinkle(sum([chunk(c) for c in range(PRE, NS)], []), CFG['SPR1'])
    XA, XBb, GW = 32, 40, 48
    unpack(A, LNA, 4, XA)
    unpack(A, LNB, 4, XBb)
    unpack(A, LNG, 4, GW)
    SA, SB, DA, DB = 56, 57, 58, 59
    A('v_add_f32 %s, %s, %s' % (v(SA), v(XA), v(XA + 1)))
    A('v_add_f32 %s, %s, %s' % (v(SB), v(XBb), v(XBb + 1)))
    A('v_mul_f32 %s, %s, %s' % (v(DA), v(XA), v(GW)))
    A('v_mul_f32 %s, %s, %s' % (v(DB), v(XBb), v(GW)))
    for i in range(1, 8):
        if i >= 2:
            A('v_add_f32 %s, %s, %s' % (v(SA), v(SA), v(XA + i)))
            A('v_add_f32 %s, %s, %s' % (v(SB), v(SB), v(XBb + i)))
        A('v_fmac_f32 %s, %s, %s' % (v(DA), v(XA + i), v(GW + i)))
        A('v_fmac_f32 %s, %s, %s' % (v(DB), v(XBb + i), v(GW + i)))
    allreduce(A, [SA, SB, DA, DB], [60, 61, 62, 63])
    A('v_mul_f32 %s, %s, %s' % (v(SA), f32(1 / 512), v(SA)))
    A('v_mul_f32 %s, %s, %s' % (v(SB), f32(1 / 512), v(SB)))
    for i in range(8):
        A('v_sub_f32 %s, %s, %s' % (v(XA + i), v(XA + i), v(SA)))
        A('v_sub_f32 %s, %s, %s' % (v(XBb + i), v(XBb + i), v(SB)))
    A('v_mul_f32 %s, %s, %s' % (v(SA), v(XA), v(XA)))
    A('v_mul_f32 %s, %s, %s' % (v(SB), v(XBb), v(XBb)))
    for i in range(1, 8):
        A('v_fmac_f32 %s, %s, %s' % (v(SA), v(XA + i), v(XA + i)))
        A('v_fmac_f32 %s, %s, %s' % (v(SB), v(XBb + i), v(XBb + i)))
    allreduce(A, [SA, SB], [60, 61])
    A('v_mov_b32 v60, %s' % f32(1e-5))
    A('v_fmamk_f32 %s, %s, %s, v60' % (v(SA), v(SA), f32(1 / 512)))
    A('v_fmamk_f32 %s, %s, %s, v60' % (v(SB), v(SB), f32(1 / 512)))
    A('v_rsq_f32 %s, %s' % (v(SA), v(SA)))
    A('v_rsq_f32 %s, %s' % (v(SB), v(SB)))
    A('v_cmp_eq_u32 vcc, 0, v2')
    A('v_lshlrev_b32 v30, 2, v2')
    A('v_cndmask_b32 %s, %s, %s, vcc' % (v(DA), v(DB), v(DA)))
    A('v_mul_f32 %s, %s, %s' % (v(DA), f32(-LOG2E), v(DA)))
    A('v_exp_f32 %s, %s' % (v(DA), v(DA)))
    for i in range(8):
        A('v_mul_f32 %s, %s, %s' % (v(XA + i), v(XA + i), v(SA)))
        A('v_mul_f32 %s, %s, %s' % (v(XBb + i), v(XBb + i), v(SB)))
    A('v_add_f32 %s, 1.0, %s' % (v(DA), v(DA)))
    A('v_rcp_f32 v24, %s' % v(DA))
    for i in range(4):
        A('v_cvt_pk_bf16_f32 %s, %s, %s' % (v(LNA + i), v(XA + 2 * i), v(XA + 2 * i + 1)))
        A('v_cvt_pk_bf16_f32 %s, %s, %s' % (v(LNB + i), v(XBb + 2 * i), v(XBb + 2 * i + 1)))
    A('s_mul_i32 s5, s28, %d' % (2 * LN_STRIDE))
    A('s_add_u32 s5, s5, %d' % LDS_LN)
    A('v_add_u32 v60, s5, v5')
    A('ds_write_b128 v60, %s' % v(LNA, 4), 'lnw')
    A('ds_write_b128 v60, %s offset:%d' % (v(LNB, 4), LN_STRIDE), 'lnw')
    A('v_mul_u32_u24 v31, %d, v14' % LN_STRIDE)
    A('v_lshl_add_u32 v31, v4, 5, v31')
    A('v_lshl_add_u32 v31, v15, 3, v31')
    A('s_lshl_b32 s5, s28, 8')
    A('s_add_u32 s5, s5, %d' % LDS_LN)
    A('v_add_u32 v31, s5, v31')
    A.flush_sprinkle()
    FB = [32, 60]
    ACC = 88
    HTR = 16

    def reads(ks):
        c, kk = ks // 2, ks % 2
        sl = c % NS
        hi = 1 if sl >= 2 else 0
        so = (sl % 2) * SLOT
        out = []
        order = [('w', 0), ('x', 0), ('x', 1), ('x', 2), ('x', 3), ('w', 1), ('w', 2)]
        for kind, n in order:
            if kind == 'x':
                out.append(('ds_read_b128 %s, %s offset:%d' % (v(FB[kk] + n * 4, 4), v(10 + kk + 2 * hi), so + n * 2048),
                            ('f', ks, 'x', n)))
            else:
                for sec in range(2):
                    out.append(('ds_read_b64_tr_b16 %s, %s offset:%d'
                                % (v(FB[kk] + 16 + n * 4 + sec * 2, 2), v(28 + hi), so + kk * 12288 + n * 1024 + sec * 512),
                                ('f', ks, 'w', n)))
        return out

    pf = []
    if CFG['PF1']:
        pre = ['v_mul_u32_u24 v25, 3584, v2', 's_mul_i32 s48, s4, %d' % (64 * 3584)]
        if CFG['MAP2'] == 0:
            pre += ['s_lshr_b32 s49, s3, 1', 's_mul_i32 s49, s49, 896']
        else:
            pre += ['s_mul_i32 s49, s3, 7', 's_lshr_b32 s49, s49, 1', 's_lshl_b32 s49, s49, 7']
        pre += ['s_add_u32 s48, s48, s49', 's_lshl_b32 s49, s28, 7', 's_add_u32 s48, s48, s49']
        for ins in touch(A, 160, 25, 44, 's48', CFG['PF1']):
            pf.append((pre, ins, 'pf'))
            pre = []
        if CFG['MAP2'] == 0:
            pre = ['s_add_u32 s49, s48, 512', 's_cmp_ge_u32 s28, 3', 's_cselect_b32 s49, s48, s49']
            for ins in touch(A, 162, 25, 44, 's49', CFG['PF1']):
                pf.append((pre, ins, 'pf'))
                pre = []

    stamp(A)
    A.wait(vm=[('ch', 0)], lg=['lnw'])
    A('s_barrier')
    stamp(A)
    for ins, tag in reads(0):
        A(ins, tag)
    loads = []
    for ks in range(16):
        c, kk = ks // 2, ks % 2
        if kk == 1 and c < 7:
            A.wait(vm=[('ch', c + 1)], lg=[('f', ks, 'w', 2)])
            A('s_barrier')
            if c % 2 == 1:
                stamp(A)
            if c + NS < 8:
                loads += chunk(c + NS)
            if c == CFG['PF1AT']:
                loads += pf
        nxt = reads(ks + 1) if ks < 15 else []
        for t in range(3):
            for tb in range(4):
                A.wait(lg=[('f', ks, 'w', t), ('f', ks, 'x', tb)])
                acc = v(ACC + (t * 4 + tb) * 4, 4)
                wf = v(FB[kk] + 16 + t * 4, 4)
                xf = v(FB[kk] + tb * 4, 4)
                c_in = '0' if ks == 0 else acc
                if t == 0:
                    A('v_mfma_f32_16x16x32_bf16 %s, %s, %s, %s' % (acc, wf, xf, c_in))
                else:
                    A('v_mfma_f32_16x16x32_bf16 %s, %s, %s, %s' % (acc, xf, wf, c_in))
                if nxt and not (t == 0 and tb < 2 and kk == 0):
                    ins, tag = nxt.pop(0)
                    A(ins, tag)
                if loads and tb % 2 == 1:
                    emit(loads.pop(0))
        assert not nxt
        if ks == 0:
            for rnd in range(2):
                for sec in range(2):
                    A('ds_read_b64_tr_b16 %s, v31 offset:%d'
                      % (v(HTR + rnd * 4 + sec * 2, 2), rnd * 128 + sec * 4 * LN_STRIDE), 'htr')
            A('s_lshr_b32 s5, s32, 8')
            A('s_add_u32 s5, s5, %d' % WS_G)
            A('s_mov_b64 exec, 3')
            A('buffer_store_dword v24, v30, s[24:27], s5 offen', 'st')
            A('s_mov_b64 exec, -1')
            A('s_lshl_b32 s5, s28, 19')
            A('s_lshl_b32 s6, s33, 7')
            A('s_add_u32 s5, s5, s6')
            if WS_HT:
                A('s_add_u32 s5, s5, %d' % WS_HT)
            A('s_add_u32 s6, s5, 0x40000')
            A.wait(lg='htr')
            A('buffer_store_dwordx4 %s, v5, s[24:27], s5 offen' % v(HTR, 4), 'st')
            A('buffer_store_dwordx4 %s, v5, s[24:27], s6 offen' % v(HTR + 4, 4), 'st')
    assert not loads
    stamp(A)

    def accr(t, tb):
        return [ACC + (t * 4 + tb) * 4 + r for r in range(4)]

    A('s_lshl_b32 s7, s31, 2')
    A('s_add_u32 s7, s7, s28')
    A('v_lshrrev_b32 v9, 1, v4')
    A('v_lshlrev_b32 v9, 15, v9')
    A('v_lshl_add_u32 v9, v3, 4, v9')
    A('v_and_b32 v8, 1, v4')
    A('v_lshl_add_u32 v9, v8, 3, v9')
    A('s_lshl_b32 s5, s7, 16')
    A('s_lshl_b32 s6, s35, 4')
    A('s_add_u32 s5, s5, s6')
    A('s_add_u32 s5, s5, %d' % WS_PQ)
    A('s_lshl_b32 s7, s7, 5')
    A('s_add_u32 s7, s7, s30')
    A('s_lshl_b32 s6, s7, 10')
    A('s_add_u32 s6, s6, %d' % WS_KVP)
    A('s_lshl_b32 s7, s7, 6')
    A('s_add_u32 s7, s7, %d' % WS_ZP)
    ONE = 84
    kregs = sum([accr(1, tb) for tb in range(4)], [])
    vregs = sum([accr(2, tb) for tb in range(4)], [])
    qregs = sum([accr(0, tb) for tb in range(4)], [])
    phi(A, kregs, list(range(32, 48)))
    for q in range(4):
        A('v_mov_b32 %s, 0x3f803f80' % v(ONE + q))
    PK, VV = 48, 56
    for q in range(8):
        A('v_cvt_pk_bf16_f32 %s, %s, %s' % (v(PK + q), v(kregs[2 * q]), v(kregs[2 * q + 1])))
        A('v_cvt_pk_bf16_f32 %s, %s, %s' % (v(VV + q), v(vregs[2 * q]), v(vregs[2 * q + 1])))
    KV, ZZ = 64, 68
    for j in range(2):
        A('v_mfma_f32_16x16x32_bf16 %s, %s, %s, %s' % (v(KV, 4), v(VV + 4 * j, 4), v(PK + 4 * j, 4), '0' if j == 0 else v(KV, 4)))
        A('v_mfma_f32_16x16x32_bf16 %s, %s, %s, %s' % (v(ZZ, 4), v(ONE, 4), v(PK + 4 * j, 4), '0' if j == 0 else v(ZZ, 4)))
    phi(A, qregs, list(range(32, 48)))
    A('buffer_store_dwordx4 %s, v5, s[24:27], s6 offen' % v(KV, 4), 'st')
    QP = 72
    for tb in range(4):
        rr = accr(0, tb)
        d = QP + tb * 2
        A('v_cvt_pk_bf16_f32 %s, %s, %s' % (v(d), v(rr[0]), v(rr[1])))
        A('v_cvt_pk_bf16_f32 %s, %s, %s' % (v(d + 1), v(rr[2]), v(rr[3])))
        A('buffer_store_dwordx2 %s, v9, s[24:27], s5 offen offset:%d' % (v(d, 2), tb * 256), 'st')
    A('s_mov_b64 exec, 0xffff')
    A('buffer_store_dword %s, v30, s[24:27], s7 offen' % v(ZZ), 'st')
    dump_stamps(A, 0, 24)
    A.label('k1_end')
    A('s_endpgm')
    return dict(name='k1_kernel', vgpr=164, agpr=0, lds=LDS_LN + 8 * LN_STRIDE)


def gemm_core(A, *, n_w, n_d, wstride, x_is_a, SXsrd, SWsrd, SPsrd, mid=None, wfar=0, tail=None):
    D = CFG['D']
    N = n_w + n_d
    ACC = 48
    WFB = [16, 32]
    PB = 16 * D

    def wd(j):
        out = []
        if j > N:
            return out
        pre = []
        if j > 0:
            pre.append('s_mov_b32 s46, s45')
        if j == N:
            return [(pre, None, None)]
        if j < n_w:
            pre.append('s_add_u32 m0, s42, %d' % ((j % D) * 4096))
            if j > 0:
                pre += ['s_add_u32 s45, s45, 1', 's_cmp_eq_u32 s45, %d' % n_w, 's_cselect_b32 s45, 0, s45']
            pre += ['s_mul_i32 s47, s45, %d' % (128 * wstride), 's_add_u32 s47, s47, s41']
            far = ' nt' if j < wfar else ''
            for q in range(4):
                out.append((pre if q == 0 else [],
                            'buffer_load_dwordx4 %s, %s, s47 offen offset:%d%s lds'
                            % (v(8 + q), s(SWsrd, 4), q * 1024, far), ('w', j)))
        else:
            jj = j - n_w
            pre += ['s_add_u32 s45, s48, %d' % jj, 's_and_b32 s45, s45, %d' % (n_d - 1), 's_lshl_b32 s47, s45, 14',
                    's_add_u32 s47, s47, s43', 's_add_u32 s45, s45, %d' % n_w]
            for st in range(2):
                for b in range(2):
                    out.append((pre if (st == 0 and b == 0) else [],
                                'buffer_load_dwordx4 %s, %s, %s, s47 offen offset:%d'
                                % (a(PB + jj * 16 + (st * 2 + b) * 4, 4), v(14 + b), s(SPsrd, 4), st * 2048),
                                ('w', j)))
        return out

    def xl(j):
        out = []
        if j >= N or j < 0:
            return out
        pre = ['s_lshl_b32 s49, s46, 14', 's_add_u32 s49, s49, s40']
        for st in range(2):
            for b in range(2):
                out.append((pre if (st == 0 and b == 0) else [],
                            'buffer_load_dwordx4 %s, %s, %s, s49 offen offset:%d'
                            % (a((j % D) * 16 + (st * 2 + b) * 4, 4), v(6 + b), s(SXsrd, 4), st * 2048),
                            ('x', j)))
        if j == N - 1 and tail is not None:
            out += tail
        return out

    def emit(item):
        pre, ins, tag = item
        for p in pre:
            A(p)
        if ins is not None:
            A(ins, tag)

    def reads(j):
        out = []
        if j >= n_w:
            return out
        for st in range(2):
            for b in range(2):
                for sec in range(2):
                    out.append(('ds_read_b64_tr_b16 %s, %s offset:%d'
                                % (v(WFB[j % 2] + (st * 2 + b) * 4 + sec * 2, 2), v(12 + b),
                                   (j % D) * 4096 + st * 2048 + sec * 512), ('r', j)))
        return out

    for it in wd(0):
        emit(it)
    for j in range(1, D):
        for it in wd(j):
            emit(it)
        for it in xl(j - 1):
            emit(it)
    yield 'prologue'
    stamp(A)
    A.wait(vm=[('w', 0)])
    stamp(A)
    for ins, tag in reads(0):
        A(ins, tag)
    for i in range(N):
        if i == n_w and mid is not None:
            mid()
        A.wait(vm=[('x', i), ('w', i + 1), ('w', i)], lg=[('r', i)])
        if i % 2 == 0:
            stamp(A)
        loads = wd(i + D) + xl(i + D - 1)
        rd = reads(i + 1)
        m = 0
        for st in range(2):
            for xb in range(2):
                for wb in range(2):
                    acc = v(ACC + (xb * 2 + wb) * 16, 16)
                    xf = a((i % D) * 16 + (st * 2 + xb) * 4, 4)
                    if i < n_w:
                        wf = v(WFB[i % 2] + (st * 2 + wb) * 4, 4)
                    else:
                        wf = a(PB + (i - n_w) * 16 + (st * 2 + wb) * 4, 4)
                    cin = '0' if (i == 0 and st == 0) else acc
                    if x_is_a:
                        A('v_mfma_f32_32x32x16_bf16 %s, %s, %s, %s' % (acc, xf, wf, cin))
                    else:
                        A('v_mfma_f32_32x32x16_bf16 %s, %s, %s, %s' % (acc, wf, xf, cin))
                    for _ in range(2):
                        if rd:
                            ins, tag = rd.pop(0)
                            A(ins, tag)
                    if loads:
                        emit(loads.pop(0))
                    m += 1
        while loads:
            emit(loads.pop(0))
        assert not rd
    stamp(A)
    A('v_add_u32 v16, s42, v5')
    for q in range(1, 4):
        A('s_xor_b32 s5, s28, %d' % q)
        A('s_mul_i32 s5, s5, %d' % (D * 4096))
        A('v_add_u32 %s, s5, v5' % v(16 + q))
    for q in range(1, 4):
        for c in range(4):
            A('ds_write_b128 v16, %s offset:%d' % (v(ACC + q * 16 + c * 4, 4), (q - 1) * 4096 + c * 1024), 'rw')
    A.wait(lg='rw')
    A('s_barrier')
    stamp(A)
    for q in range(1, 4):
        for c in range(4):
            A('ds_read_b128 %s, %s offset:%d' % (v(ACC + q * 16 + c * 4, 4), v(16 + q), (q - 1) * 4096 + c * 1024),
              ('rr', q))
    A.wait(lg=[('rr', 2)])
    for r in range(16):
        A('v_add_f32 %s, %s, %s' % (v(ACC + 16 + r), v(ACC + 16 + r), v(ACC + 32 + r)))
    A.wait(lg=[('rr', 3)])
    for r in range(16):
        A('v_add_f32 %s, %s, %s' % (v(ACC + r), v(ACC + r), v(ACC + 48 + r)))
    for r in range(16):
        A('v_add_f32 %s, %s, %s' % (v(ACC + r), v(ACC + r), v(ACC + 16 + r)))
    yield 'done'


def gemm_addr_setup(A, wstride, perm_x, perm_w):
    D = CFG['D']
    A('v_lshlrev_b32 v5, 4, v2')
    A('v_and_b32 v3, 31, v2')
    A('v_lshrrev_b32 v4, 5, v2')
    if perm_x:
        A('v_bfe_u32 v6, v3, 2, 1')
        A('v_lshlrev_b32 v6, 4, v6')
        A('v_and_b32 v7, 3, v3')
        A('v_add_u32 v6, v6, v7')
        A('v_lshrrev_b32 v7, 3, v3')
        A('v_lshl_add_u32 v6, v7, 2, v6')
        A('v_lshlrev_b32 v6, 4, v6')
    else:
        A('v_lshlrev_b32 v6, 4, v3')
    A('v_lshl_add_u32 v6, v4, 10, v6')
    A('s_lshr_b32 s5, s28, 1')
    A('s_lshl_b32 s5, s5, 9')
    A('v_or_b32 v6, s5, v6')
    A('v_xor_b32 v7, 512, v6')
    A('v_lshrrev_b32 v9, 3, v2')
    A('v_mul_u32_u24 v8, %d, v9' % wstride)
    A('v_bfe_u32 v9, v2, 4, 1')
    A('v_lshlrev_b32 v9, 2, v9')
    A('v_and_b32 v10, 7, v2')
    A('v_xor_b32 v9, v9, v10')
    A('v_lshl_add_u32 v8, v9, 4, v8')
    for q in range(1, 4):
        A('v_add_u32 %s, %d, v8' % (v(8 + q), q * (8 * wstride - 1024)))
    A('s_mul_i32 s42, s28, %d' % (D * 4096))


def gemm_tr_setup(A, perm_w):
    A('v_bfe_u32 v16, v2, 2, 2')
    A('v_lshl_add_u32 v16, v4, 3, v16')
    A('v_lshlrev_b32 v12, 7, v16')
    A('v_bfe_u32 v16, v2, 3, 1')
    A('v_lshl_add_u32 v12, v16, 6, v12')
    A('v_bfe_u32 v16, v2, 4, 1')
    if perm_w:
        A('v_lshl_add_u32 v12, v16, 4, v12')
        A('v_and_b32 v16, 1, v2')
        A('v_lshl_add_u32 v12, v16, 5, v12')
        A('v_bfe_u32 v16, v2, 1, 1')
        A('v_lshl_add_u32 v12, v16, 3, v12')
    else:
        A('v_lshl_add_u32 v12, v16, 5, v12')
        A('v_and_b32 v16, 3, v2')
        A('v_lshl_add_u32 v12, v16, 3, v12')
    A('s_and_b32 s5, s28, 1')
    A('s_lshl_b32 s5, s5, 6')
    A('v_xor_b32 v12, s5, v12')
    A('v_add_u32 v12, s42, v12')
    A('v_xor_b32 v13, 64, v12')


def gen_k2(A):
    D = CFG['D']
    header(A, 'k2_kernel')
    SWS, SW1, SB1, SWO = 12, 16, 20, 24
    ACC = 48
    A('s_cmp_ge_u32 s2, 256')
    A('s_cbranch_scc1 k2_end')
    A('s_load_dwordx2 s[12:13], s[0:1], 88')
    A('s_load_dwordx2 s[16:17], s[0:1], 32')
    A('s_load_dwordx2 s[20:21], s[0:1], 40')
    A('s_load_dwordx2 s[24:25], s[0:1], 16')
    A('s_load_dwordx2 s[52:53], s[0:1], 48')
    srd(A, 52, 2048 * 1792 * 2)
    A('v_lshrrev_b32 v1, 6, v0')
    A('v_and_b32 v2, 63, v0')
    A('v_readfirstlane_b32 s28, v1')
    srd(A, SWS, WS_SIZE)
    srd(A, SW1, 2048 * 1792 * 2)
    srd(A, SB1, 1792 * 2)
    srd(A, SWO, 512 * 512 * 2)
    A('s_and_b32 s3, s2, 7')
    A('s_lshr_b32 s4, s2, 3')
    A('s_cmp_ge_u32 s4, 28')
    A('s_cbranch_scc1 k2_spare')
    if CFG['MAP2'] == 0:
        A('s_and_b32 s5, s3, 1')
        A('s_lshl_b32 s5, s5, 2')
        A('s_and_b32 s6, s4, 3')
        A('s_add_u32 s30, s5, s6')
        A('s_lshr_b32 s5, s3, 1')
        A('s_mul_i32 s5, s5, 7')
        A('s_lshr_b32 s6, s4, 2')
        A('s_add_u32 s31, s5, s6')
        A('s_mul_i32 s45, s6, %d' % CFG['R2A'])
        A('s_lshr_b32 s45, s45, 3')
        A('s_and_b32 s6, s4, 3')
        A('s_mul_i32 s6, s6, %d' % CFG['R2B'])
    else:
        A('s_mul_i32 s5, s3, 28')
        A('s_add_u32 s5, s5, s4')
        A('s_and_b32 s30, s5, 7')
        A('s_lshr_b32 s31, s5, 3')
        A('s_and_b32 s45, s31, 3')
        A('s_mul_i32 s45, s45, %d' % CFG['R2A'])
        A('s_lshr_b32 s45, s45, 3')
        A('s_mul_i32 s6, s30, %d' % CFG['R2B'])
    A('s_add_u32 s45, s45, s6')
    A('s_and_b32 s45, s45, 15')
    gemm_addr_setup(A, 3584, perm_x=False, perm_w=True)
    A('s_lshl_b32 s40, s30, 18')
    A('s_lshl_b32 s5, s28, 12')
    A('s_add_u32 s40, s40, s5')
    if WS_HT:
        A('s_add_u32 s40, s40, %d' % WS_HT)
    A('s_mul_i32 s41, s28, %d' % (32 * 3584))
    A('s_lshl_b32 s5, s31, 7')
    A('s_add_u32 s41, s41, s5')
    A('v_lshlrev_b32 v14, 5, v4')
    A('s_and_b32 s6, s28, 1')
    A('s_lshl_b32 s6, s6, 6')
    A('s_add_u32 s44, s5, s6')
    A.wait_all(vm=False)
    stamp(A)
    tail = None
    if CFG['PF2']:
        pre = ['v_lshlrev_b32 v15, 12, v2', 's_lshl_b32 s50, s4, 18']
        if CFG['MAP3'] == 0:
            pre += ['s_lshl_b32 s51, s3, 9']
        else:
            pre += ['s_lshr_b32 s51, s3, 1', 's_lshl_b32 s51, s51, 10']
        pre += ['s_add_u32 s50, s50, s51', 's_lshl_b32 s51, s28, 7', 's_add_u32 s50, s50, s51']
        tail = []
        for off in ((0,) if CFG['MAP3'] == 0 else (0, 512)):
            for ins in touch(A, 120 + off // 256, 15, 52, 's50', CFG['PF2'], off=off):
                tail.append((pre, ins, 'pf'))
                pre = []
    core = gemm_core(A, n_w=16, n_d=0, wstride=3584, x_is_a=False, SXsrd=SWS, SWsrd=SW1, SPsrd=SWS,
                     wfar=CFG['WFAR2'], tail=tail)
    next(core)
    BI = 112
    A('buffer_load_dwordx4 %s, v14, s[20:23], s44 offen' % v(BI, 4), 'b')
    A('buffer_load_dwordx4 %s, v14, s[20:23], s44 offen offset:16' % v(BI + 4, 4), 'b')
    gemm_tr_setup(A, perm_w=True)
    next(core)
    A.wait(vm='b')
    BF = 16
    unpack(A, BI, 8, BF)
    T = 64
    c2 = -2.0 * math.sqrt(2.0 / math.pi) * LOG2E
    A('v_mov_b32 v32, %s' % f32(c2))
    for r in range(16):
        A('v_add_f32 %s, %s, %s' % (v(ACC + r), v(ACC + r), v(BF + r)))
    for r in range(16):
        A('v_mul_f32 %s, %s, %s' % (v(T + r), v(ACC + r), v(ACC + r)))
    for r in range(16):
        A('v_fmamk_f32 %s, %s, %s, v32' % (v(T + r), v(T + r), f32(c2 * 0.044715)))
    for r in range(16):
        A('v_mul_f32 %s, %s, %s' % (v(T + r), v(T + r), v(ACC + r)))
    for r in range(16):
        A('v_exp_f32 %s, %s' % (v(T + r), v(T + r)))
    for r in range(16):
        A('v_add_f32 %s, 1.0, %s' % (v(T + r), v(T + r)))
    for r in range(16):
        A('v_rcp_f32 %s, %s' % (v(T + r), v(T + r)))
    for r in range(16):
        A('v_mul_f32 %s, %s, %s' % (v(T + r), v(T + r), v(ACC + r)))
    for q in range(8):
        A('v_cvt_pk_bf16_f32 %s, %s, %s' % (v(80 + q), v(T + 2 * q), v(T + 2 * q + 1)))
    A('v_lshlrev_b32 v14, 4, v3')
    A('v_lshl_add_u32 v14, v4, 11, v14')
    A('s_mul_i32 s5, s30, %d' % UM_TILE)
    A('s_lshl_b32 s6, s31, 13')
    A('s_add_u32 s5, s5, s6')
    A('s_and_b32 s6, s28, 1')
    A('s_lshl_b32 s6, s6, 12')
    A('s_add_u32 s5, s5, s6')
    A('s_lshr_b32 s6, s28, 1')
    A('s_lshl_b32 s6, s6, 9')
    A('s_add_u32 s5, s5, s6')
    A('s_add_u32 s5, s5, %d' % WS_UM)
    A('buffer_store_dwordx4 v[80:83], v14, s[12:15], s5 offen', 'st')
    A('buffer_store_dwordx4 v[84:87], v14, s[12:15], s5 offen offset:1024', 'st')
    dump_stamps(A, 1, 12)
    A('s_endpgm')
    STAMP['n'] = 2
    A.label('k2_spare')
    A.reset_counters()
    A.smem = True
    A('s_lshl_b32 s30, s3, 2')
    A('s_add_u32 s30, s30, s4')
    A('s_sub_u32 s30, s30, 28')
    A('v_lshlrev_b32 v5, 4, v2')
    A('v_lshlrev_b32 v6, 2, v2')
    A('v_lshlrev_b32 v7, 4, v0')
    A('v_lshlrev_b32 v8, 2, v0')
    A('v_and_b32 v3, 15, v2')
    A('v_lshrrev_b32 v4, 4, v2')
    A('v_lshlrev_b32 v9, 10, v4')
    A('v_lshl_add_u32 v9, v3, 4, v9')
    A('s_lshl_b32 s31, s30, 14')
    A('s_lshl_b32 s32, s30, 15')
    A('s_lshl_b32 s5, s28, 13')
    A('s_add_u32 s32, s32, s5')
    A('s_add_u32 s32, s32, %d' % WS_KVP)
    A('s_lshl_b32 s33, s30, 11')
    A('s_add_u32 s33, s33, %d' % WS_ZP)
    A('s_lshl_b32 s34, s28, 8')
    A('s_add_u32 s34, s34, s31')
    A('s_lshl_b32 s35, s28, 12')
    A('s_lshl_b32 s36, s30, 16')
    A('s_add_u32 s36, s36, %d' % WS_PQ)
    A.wait_all(vm=False)
    ZR, KVR, PQR, GR = 48, 16, 80, 144
    for i in range(8):
        if i == 4:
            A('s_add_u32 s32, s32, 4096')
        A('buffer_load_dwordx4 %s, v5, s[12:15], s32 offen offset:%d' % (v(KVR + 4 * i, 4), (i % 4) * 1024), 'kv')
    for i in range(8):
        A('buffer_load_dword %s, v6, s[12:15], s33 offen offset:%d' % (v(ZR + i), i * 256), 'z')
    for q in range(4):
        A('s_add_u32 m0, s35, %d' % (q * 1024))
        A('s_add_u32 s37, s34, %d' % (q * 4096))
        A('buffer_load_dwordx4 v9, s[24:27], s37 offen lds', 'wo')
    A('s_mov_b32 s38, %d' % WS_G)
    for i in range(8):
        A('s_add_u32 s37, s36, %d' % (i * 4096))
        A('s_add_u32 s39, s36, %d' % (i * 4096 + 32768))
        A('buffer_load_dwordx4 %s, v7, s[12:15], s37 offen' % v(PQR + 8 * i, 4), ('pq', i))
        A('buffer_load_dwordx4 %s, v7, s[12:15], s39 offen' % v(PQR + 8 * i + 4, 4), ('pq', i))
        if i == 4:
            A('s_add_u32 s38, s38, 4096')
        A('buffer_load_dword %s, v8, s[12:15], s38 offen offset:%d' % (v(GR + i), (i % 4) * 1024), ('pq', i))
    A.wait(vm='kv')
    n = 8
    while n > 1:
        n //= 2
        for i in range(n):
            for r in range(4):
                A('v_add_f32 %s, %s, %s' % (v(KVR + 4 * i + r), v(KVR + 4 * i + r), v(KVR + 4 * (i + n) + r)))
    A('ds_write_b128 v7, %s offset:16384' % v(KVR, 4), 'kvw')
    A.wait(vm='z')
    n = 8
    while n > 1:
        n //= 2
        for i in range(n):
            A('v_add_f32 %s, %s, %s' % (v(ZR + i), v(ZR + i), v(ZR + i + n)))
    cross_rows(A, [ZR], [ZR + 1])
    ZS = 48
    for c in range(16):
        A('v_readlane_b32 %s, %s, %d' % (s(ZS + c), v(ZR), c))
    A.wait(lg='kvw')
    A('s_barrier')
    for w in range(4):
        A('ds_read_b128 %s, v5 offset:%d' % (v(KVR + 4 * w, 4), 16384 + w * 1024), 'kvr')
    A.wait(lg='kvr')
    for r in range(4):
        A('v_add_f32 %s, %s, %s' % (v(KVR + r), v(KVR + r), v(KVR + 4 + r)))
        A('v_add_f32 %s, %s, %s' % (v(KVR + 8 + r), v(KVR + 8 + r), v(KVR + 12 + r)))
    for r in range(4):
        A('v_add_f32 %s, %s, %s' % (v(KVR + r), v(KVR + r), v(KVR + 8 + r)))
    A('v_cvt_pk_bf16_f32 v12, %s, %s' % (v(KVR), v(KVR + 1)))
    A('v_cvt_pk_bf16_f32 v13, %s, %s' % (v(KVR + 2), v(KVR + 3)))
    A('v_lshrrev_b32 v14, 2, v2')
    A('v_lshlrev_b32 v14, 8, v14')
    A('v_and_b32 v15, 3, v2')
    A('v_lshl_add_u32 v14, v15, 3, v14')
    A('v_add_u32 v14, s35, v14')
    A.wait(vm='wo')
    for nb in range(8):
        A('ds_read_b64_tr_b16 %s, v14 offset:%d' % (v(20 + 2 * nb, 2), nb * 32), 'wt')
    A.wait(lg='wt')
    for nb in range(8):
        A('v_mfma_f32_16x16x16_bf16 %s, v[12:13], %s, 0' % (v(40 + 4 * nb, 4), v(20 + 2 * nb, 2)))
    A('v_lshrrev_b32 v14, 1, v4')
    A('v_lshlrev_b32 v14, 10, v14')
    A('v_lshl_add_u32 v14, v3, 4, v14')
    A('v_and_b32 v15, 1, v4')
    A('v_lshl_add_u32 v14, v15, 3, v14')
    A('s_mul_i32 s5, s28, %d' % (2 * UM_TILE))
    A('s_lshl_b32 s6, s30, 11')
    A('s_add_u32 s5, s5, s6')
    A('s_add_u32 s5, s5, %d' % (WS_UM + 224 * 1024))
    A('s_add_u32 s6, s5, %d' % UM_TILE)
    for nb in range(8):
        A('v_cvt_pk_bf16_f32 %s, %s, %s' % (v(20 + 2 * nb), v(40 + 4 * nb), v(41 + 4 * nb)))
        A('v_cvt_pk_bf16_f32 %s, %s, %s' % (v(21 + 2 * nb), v(42 + 4 * nb), v(43 + 4 * nb)))
        A('buffer_store_dwordx2 %s, v14, s[12:15], %s offen offset:%d'
          % (v(20 + 2 * nb, 2), s(5 + nb // 4), (nb % 4) * 256), 'st')
    A('s_lshl_b32 s5, s28, 16')
    A('s_lshl_b32 s6, s30, 11')
    A('s_add_u32 s5, s5, s6')
    A('s_add_u32 s5, s5, %d' % WS_PP)
    for i in range(8):
        U = 40 + (i % 2) * 20
        A.wait(vm=[('pq', i)])
        unpack(A, PQR + 8 * i, 8, U)
        A('v_mov_b32 %s, %s' % (v(U + 16), f32(1e-6)))
        A('v_mul_f32 %s, %s, %s' % (v(U + 17), s(ZS + 1), v(U + 1)))
        A('v_fmac_f32 %s, %s, %s' % (v(U + 16), s(ZS), v(U)))
        for c in range(2, 16):
            A('v_fmac_f32 %s, %s, %s' % (v(U + 16 + c % 2), s(ZS + c), v(U + c)))
        A('v_add_f32 %s, %s, %s' % (v(U + 16), v(U + 16), v(U + 17)))
        A('v_rcp_f32 %s, %s' % (v(U + 16), v(U + 16)))
        A('v_mul_f32 %s, %s, %s' % (v(U + 16), v(U + 16), v(GR + i)))
        for c in range(16):
            A('v_mul_f32 %s, %s, %s' % (v(U + c), v(U + c), v(U + 16)))
        for q in range(8):
            A('v_cvt_pk_bf16_f32 %s, %s, %s' % (v(PQR + 8 * i + q), v(U + 2 * q), v(U + 2 * q + 1)))
        A('buffer_store_dwordx4 %s, v5, s[12:15], s5 offen' % v(PQR + 8 * i, 4), 'st')
        A('buffer_store_dwordx4 %s, v5, s[12:15], s5 offen offset:1024' % v(PQR + 8 * i + 4, 4), 'st')
        if i < 7:
            A('s_add_u32 s5, s5, 0x40000')
    dump_stamps(A, 1, 12)
    A.label('k2_end')
    A('s_endpgm')
    return dict(name='k2_kernel', vgpr=152, agpr=16 * D, lds=max(4 * D * 4096, 84 * 1024))


def gen_k3(A):
    D = CFG['D']
    header(A, 'k3_kernel')
    SWS, SW2, SB2, SOUT = 12, 16, 20, 24
    ACC = 48
    A('s_cmp_ge_u32 s2, 256')
    A('s_cbranch_scc1 k3_end')
    A('s_load_dwordx2 s[12:13], s[0:1], 88')
    A('s_load_dwordx2 s[16:17], s[0:1], 48')
    A('s_load_dwordx2 s[20:21], s[0:1], 56')
    A('s_load_dwordx2 s[24:25], s[0:1], 72')
    A('v_lshrrev_b32 v1, 6, v0')
    A('v_and_b32 v2, 63, v0')
    A('v_readfirstlane_b32 s28, v1')
    srd(A, SWS, WS_SIZE)
    srd(A, SW2, 2048 * 1792 * 2)
    srd(A, SB2, 2048 * 2)
    srd(A, SOUT, 2048 * 512 * 2)
    A('s_and_b32 s3, s2, 7')
    A('s_lshr_b32 s4, s2, 3')
    if CFG['MAP3'] == 0:
        A('s_and_b32 s30, s4, 7')
        A('s_lshl_b32 s5, s3, 2')
        A('s_lshr_b32 s6, s4, 3')
        A('s_add_u32 s31, s5, s6')
        A('s_mov_b32 s7, s30')
    else:
        A('s_and_b32 s5, s3, 1')
        A('s_lshl_b32 s5, s5, 2')
        A('s_and_b32 s7, s4, 3')
        A('s_add_u32 s30, s5, s7')
        A('s_lshr_b32 s5, s3, 1')
        A('s_lshl_b32 s5, s5, 3')
        A('s_lshr_b32 s6, s4, 2')
        A('s_add_u32 s31, s5, s6')
    A('s_mul_i32 s45, s6, %d' % CFG['R3A'])
    A('s_mul_i32 s5, s7, %d' % CFG['R3B'])
    A('s_add_u32 s45, s45, s5')
    A('s_lshr_b32 s45, s45, 3')
    A('s_sub_u32 s5, s45, 14')
    A('s_cmp_ge_u32 s45, 14')
    A('s_cselect_b32 s45, s5, s45')
    if CFG['R3A'] or CFG['R3B']:
        A('s_add_u32 s48, s6, s7')
    else:
        A('s_mov_b32 s48, 0')
    gemm_addr_setup(A, 4096, perm_x=True, perm_w=False)
    A('s_mul_i32 s40, s30, %d' % UM_TILE)
    A('s_lshl_b32 s5, s28, 12')
    A('s_add_u32 s40, s40, s5')
    A('s_add_u32 s40, s40, %d' % WS_UM)
    A('s_lshl_b32 s43, s31, 16')
    A('s_add_u32 s43, s43, s5')
    A('s_add_u32 s43, s43, %d' % WS_PP)
    A('s_lshl_b32 s41, s28, 17')
    A('s_lshl_b32 s5, s31, 7')
    A('s_add_u32 s41, s41, s5')
    A('v_lshlrev_b32 v14, 4, v3')
    A('v_lshl_add_u32 v14, v4, 10, v14')
    A('s_and_b32 s6, s28, 1')
    A('s_lshl_b32 s7, s6, 9')
    A('v_or_b32 v14, s7, v14')
    A('v_xor_b32 v15, 512, v14')
    A('s_lshl_b32 s7, s6, 5')
    A('v_or_b32 v112, s7, v3')
    A('v_lshlrev_b32 v113, 2, v112')
    A('v_xor_b32 v114, 128, v113')
    A('v_lshlrev_b32 v115, 1, v112')
    A('s_lshl_b32 s44, s31, 8')
    A('s_add_u32 s44, s44, %d' % WS_G)
    A.wait_all(vm=False)
    stamp(A)

    def mid():
        A.wait(vm='g')
        A('v_sub_f32 v116, 1.0, v116')
        A('v_sub_f32 v117, 1.0, v117')
        for q in range(4):
            for r in range(16):
                A('v_mul_f32 %s, %s, %s' % (v(ACC + q * 16 + r), v(ACC + q * 16 + r), v(116 + (q & 1))))

    core = gemm_core(A, n_w=14, n_d=4, wstride=4096, x_is_a=True, SXsrd=SWS, SWsrd=SW2, SPsrd=SWS, mid=mid,
                     wfar=CFG['WFAR3'])
    next(core)
    A('buffer_load_dword v116, v113, s[12:15], s44 offen', 'g')
    A('buffer_load_dword v117, v114, s[12:15], s44 offen', 'g')
    A('buffer_load_ushort v118, v115, s[20:23], s5 offen', 'g')
    gemm_tr_setup(A, perm_w=False)
    next(core)
    A('v_lshlrev_b32 v118, 16, v118')
    A('v_mul_f32 v118, v118, v116')
    for r in range(16):
        A('v_add_f32 %s, %s, v118' % (v(ACC + r), v(ACC + r)))
    for q in range(8):
        A('v_cvt_pk_bf16_f32 %s, %s, %s' % (v(80 + q), v(ACC + 2 * q), v(ACC + 2 * q + 1)))
    A('v_lshlrev_b32 v14, 10, v112')
    A('v_lshl_add_u32 v14, v4, 5, v14')
    A('s_lshl_b32 s5, s31, 16')
    A('s_lshl_b32 s6, s30, 7')
    A('s_add_u32 s5, s5, s6')
    A('s_lshr_b32 s6, s28, 1')
    A('s_lshl_b32 s6, s6, 6')
    A('s_add_u32 s5, s5, s6')
    A('buffer_store_dwordx4 v[80:83], v14, s[24:27], s5 offen', 'st')
    A('buffer_store_dwordx4 v[84:87], v14, s[24:27], s5 offen offset:16', 'st')
    dump_stamps(A, 2, 12)
    A.label('k3_end')
    A('s_endpgm')
    return dict(name='k3_kernel', vgpr=120, agpr=16 * D + 64, lds=max(4 * D * 4096, 84 * 1024))


def build(out_path):
    A = Asm()
    infos = [gen_k1(A), gen_k2(A), gen_k3(A)]
    ref = open(REF).read().split('\n')
    head = [l for l in ref if l.startswith(';') and '@launch' not in l and 'Override launch' not in l
            and 'grid=ceil' not in l]
    txt = '\n'.join(head) + '\n'
    for k in infos:
        txt += '; @launch kernel=%s grid=(256,1,1) block=(256,1,1) lds=%d\n' % (k['name'], k['lds'])
    txt += '.amdgcn_target "amdgcn-amd-amdhsa--gfx950"\n.text\n'
    txt += A.text()
    txt += '.section .rodata,"a"\n'
    for k in infos:
        acc_off = (k['vgpr'] + 3) // 4 * 4
        txt += '''.p2align 6
.amdhsa_kernel %s
  .amdhsa_next_free_vgpr %d
  .amdhsa_next_free_sgpr 102
  .amdhsa_accum_offset %d
  .amdhsa_group_segment_fixed_size 0
  .amdhsa_kernarg_size 96
  .amdhsa_user_sgpr_count 2
  .amdhsa_user_sgpr_kernarg_segment_ptr 1
  .amdhsa_system_sgpr_workgroup_id_x 1
.end_amdhsa_kernel
''' % (k['name'], acc_off + k['agpr'], acc_off)
    open(out_path, 'w').write(txt)


if __name__ == '__main__':
    out = sys.argv[1] if len(sys.argv) > 1 else 'cdna_kernels/%s.s' % NAME
    for kv in sys.argv[2:]:
        k, val = kv.split('=')
        CFG[k] = int(val)
    build(out)
```

```python
import sys
src=open(sys.argv[1]).read()
def spin(mode):
    extra = {0: 's_mov_b32 s30, 0', 1: 's_sub_u32 s30, s22, s20', 2: 's_sub_u32 s30, s24, s22', 3: 's_sub_u32 s30, s26, s24'}[mode]
    return '''.globl nop_kernel
.p2align 8
.type nop_kernel,@function
nop_kernel:
    s_cmp_ge_u32 s2, 1
    s_cbranch_scc1 nop_end
    s_memrealtime s[26:27]
    s_load_dwordx2 s[12:13], s[0:1], 88
    s_mov_b32 s14, 0x10000000
    s_mov_b32 s15, 0x20000
    v_mov_b32 v1, 0xA00000
    v_mov_b32 v2, 0xA40000
    v_mov_b32 v3, 0xA80000
    s_waitcnt lgkmcnt(0)
    buffer_load_dword v4, v1, s[12:15], 0 offen
    buffer_load_dword v5, v2, s[12:15], 0 offen
    buffer_load_dword v6, v3, s[12:15], 0 offen
    s_waitcnt vmcnt(0)
    v_readfirstlane_b32 s20, v4
    v_readfirstlane_b32 s22, v5
    v_readfirstlane_b32 s24, v6
    s_nop 4
    %s
    s_lshl_b32 s30, s30, 2
    s_min_u32 s30, s30, 20000
    s_add_u32 s30, s30, 6000
    s_mov_b32 s31, 0
nop_loop:
    s_memrealtime s[28:29]
    s_waitcnt lgkmcnt(0)
    s_sub_u32 s28, s28, s20
    s_add_u32 s31, s31, 1
    s_cmp_ge_u32 s31, 100000
    s_cbranch_scc1 nop_end
    s_cmp_lt_u32 s28, s30
    s_cbranch_scc1 nop_loop
nop_end:
    s_endpgm
''' % extra
nop_kd='''.p2align 6
.amdhsa_kernel nop_kernel
  .amdhsa_next_free_vgpr 8
  .amdhsa_next_free_sgpr 40
  .amdhsa_accum_offset 8
  .amdhsa_group_segment_fixed_size 0
  .amdhsa_kernarg_size 96
  .amdhsa_user_sgpr_count 2
  .amdhsa_user_sgpr_kernarg_segment_ptr 1
  .amdhsa_system_sgpr_workgroup_id_x 1
.end_amdhsa_kernel
'''
L='; @launch kernel=nop_kernel grid=(8,1,1) block=(64,1,1) lds=0\n'
for m in range(4):
    t=src.replace('.section .rodata,"a"\n', spin(m)+'.section .rodata,"a"\n')+nop_kd
    j=t.index('.amdgcn_target')
    t=t[:j]+L+t[j:]
    open('sp%d.s' % m,'w').write(t)
```

```python
import sys
import math
from asmlib import Asm, f32, v, a, s
from gen import (NAME, REF, WS_HT, WS_PQ, WS_PP, WS_UM, WS_KVP, WS_ZP, WS_G, WS_SIZE, UM_TILE, LOG2E,
                 srd, phi, allreduce, cross_rows, unpack)

WS_E = 0x9A0000
WS_F1 = 0x9B0000
WS_F2 = 0x9C0000
WS_F3 = 0x9E0000
WS_F4 = 0x9E8000
WS_F5 = 0xA10000
WS_STAMP = 0xC00000
OOB = 0x40000000

CFG = dict(DW2=4, DX2=4, DW3=5, DX3=3, ROT1=1, T1=0, PF1=0, PF1AT=3, MAP2=1, R2A=0, R2B=2, MAP3=0, R3A=0, R3B=14,
           PF2=0, STAMPS=0, SST=0, CODEPF=1, F4AT=2, FILL2=1, SPRE=12, SPF=0, EARLY2=0, F2AT=-9, F3AT=12, TPOS=2, PPAT=2, SPF0=0, FILLN=0, POST4=6, PRE1=2, W2E=3, F1AT=7, R2O=0, STEP=4, STEP0=0, DEM1=0, PRE0=4, PRE0B=0, SPR1=40, EW=2, EW3=2, EW3B=5, X2=3, X3=3, LA1=3, FBAR=1, XS2=0)

KN = NAME + '_kernel'
SWS, SX, SWQ, SGW, SW1, SW2, SB1, SB2, SOUT, SWO = 8, 12, 16, 20, 24, 44, 48, 52, 56, 60
ST = 29
VL0 = 169
VTAG = 170
VPA, VPD = 171, 172
STAMP = {'n': 0, 'lane': 0}


VST = 240


def stamp(A, grp=0, real=False):
    if not CFG['STAMPS']:
        return
    n = STAMP['n']
    assert n < 10, 'too many stamps'
    A.raw('    %s %s' % ('s_memrealtime' if real else 's_memtime', s(82 + 2 * n, 2)))
    STAMP['n'] = n + 1


def flush(A, to=None):
    if not CFG['STAMPS']:
        return
    A.raw('    s_waitcnt lgkmcnt(0)')
    for i in range(2 * STAMP['n']):
        A('v_writelane_b32 %s, %s, %d' % (v(VST), s(82 + i), STAMP['lane'] + i))
    STAMP['lane'] += 2 * STAMP['n']
    STAMP['n'] = 0
    if to is not None:
        assert STAMP['lane'] <= to, STAMP['lane']
        STAMP['lane'] = to
    assert STAMP['lane'] <= 64


def emit(A, item):
    pre, ins, tag = item
    for p_ in pre:
        A(p_)
    if ins is not None:
        A(ins, tag)


SLOW = []


def poll_issue(soff, tag):
    return ([], 'buffer_load_dword %s, %s, %s, %s offen sc1' % (v(VPD), v(VPA), s(SWS, 4), soff), tag)


def poll_check(A, soff, tag, name):
    A.wait(vm=[tag])
    A('v_cmp_ne_u32 vcc, s%d, %s' % (ST, v(VPD)))
    A('s_nop 1')
    A('s_cbranch_vccnz slow_%s' % name)
    A.label('back_%s' % name)
    SLOW.append((soff, name))


def emit_slow(A):
    for soff, name in SLOW:
        A.label('slow_%s' % name)
        A.raw('    s_mov_b32 s7, 0')
        A.label('slowl_%s' % name)
        A.raw('    buffer_load_dword %s, %s, %s, %s offen sc1' % (v(VPD), v(VPA), s(SWS, 4), soff))
        A.raw('    s_add_u32 s7, s7, 1')
        A.raw('    s_cmp_ge_u32 s7, 0x40000')
        A.raw('    s_waitcnt vmcnt(0)')
        A.raw('    s_cbranch_scc1 back_%s' % name)
        A.raw('    v_cmp_ne_u32 vcc, s%d, %s' % (ST, v(VPD)))
        A.raw('    s_nop 1')
        A.raw('    s_cbranch_vccnz slowl_%s' % name)
        A.raw('    s_branch back_%s' % name)


def flag_store(soff, tag='fl'):
    return ([], 'buffer_store_dword %s, %s, %s, %s offen sc1' % (v(VTAG), v(VL0), s(SWS, 4), soff), tag)


class Gemm:
    def __init__(self, A, nm, n, wstride, x_is_a, srdw, vx, vw, vt, sxb, swb, srot, slds, tmp, DW, DX, ring, acc, scls):
        self.__dict__.update(locals())
        self.wq = {j: self.w_items(j) for j in range(n)}
        self.xq = {j: self.x_items(j) for j in range(n)}

    def phys(self, j, t):
        n = self.n
        if (j | 3) < n:
            L = ['s_xor_b32 s%d, s%d, %d' % (t, self.scls, j)]
        else:
            L = ['s_and_b32 s%d, s%d, 1' % (t, self.scls), 's_xor_b32 s%d, s%d, %d' % (t, t, j)]
        L.append('s_add_u32 s%d, s%d, s%d' % (t, t, self.srot))
        if n & (n - 1) == 0:
            return L + ['s_and_b32 s%d, s%d, %d' % (t, t, n - 1)]
        return L + ['s_cmp_ge_u32 s%d, %d' % (t, n), 's_cselect_b32 s6, %d, 0' % n, 's_sub_u32 s%d, s%d, s6' % (t, t)]

    def w_items(self, j):
        t = self.tmp
        pre = self.phys(j, t) + ['s_mul_i32 s%d, s%d, %d' % (t, t, 128 * self.wstride),
                                 's_add_u32 s%d, s%d, s%d' % (t, t, self.swb),
                                 's_add_u32 m0, s%d, %d' % (self.slds, self.ring(j % self.DW))]
        out = []
        for q in range(4):
            out.append((pre, 'buffer_load_dwordx4 %s, %s, s%d offen offset:%d lds'
                        % (v(self.vw + q), s(self.srdw, 4), t, q * 1024), (self.nm, 'w', j)))
            pre = []
        return out

    def x_items(self, j):
        t = self.tmp + 1
        pre = self.phys(j, t) + ['s_lshl_b32 s%d, s%d, 14' % (t, t), 's_add_u32 s%d, s%d, s%d' % (t, t, self.sxb)]
        out = []
        for st in range(2):
            for b in range(2):
                out.append((pre, 'buffer_load_dwordx4 %s, %s, %s, s%d offen offset:%d sc1'
                            % (a((j % self.DX) * 16 + (st * 2 + b) * 4, 4), v(self.vx + b), s(SWS, 4), t, st * 2048),
                            (self.nm, 'x', j)))
                pre = []
        return out

    def take_w(self, j):
        return self.wq.pop(j, [])

    def take_x(self, j):
        return self.xq.pop(j, [])

    def reads(self, j):
        out = []
        if j >= self.n:
            return out
        for st in range(2):
            for b in range(2):
                for sec in range(2):
                    out.append(('ds_read_b64_tr_b16 %s, %s offset:%d'
                                % (v(16 + (j % 2) * 16 + (st * 2 + b) * 4 + sec * 2, 2), v(self.vt + b),
                                   self.ring(j % self.DW) + st * 2048 + sec * 512), (self.nm, 'r', j)))
        return out

    def run(self, fill=None, hooks=None, fill_every=2, sgrp=0, valu=None):
        A, n, DW, DX = self.A, self.n, self.DW, self.DX
        fill = fill if fill is not None else []
        hooks = hooks or {}
        fill_open = not CFG['FBAR']
        for j in range(max(DW, DX)):
            if j < DW:
                for it in self.take_w(j):
                    emit(A, it)
            if j >= 1 and j - 1 < DX - 1:
                for it in self.take_x(j - 1):
                    emit(A, it)
            if j - 10 in hooks:
                hooks[j - 10]()
        A.wait(vm=[(self.nm, 'w', 0)])
        for ins, tag in self.reads(0):
            A(ins, tag)
        for i in range(n):
            A.wait(vm=[(self.nm, 'x', i), (self.nm, 'w', i + 1)], lg=[(self.nm, 'r', i)])
            if i % CFG['STEP'] == 0 and i // CFG['STEP'] >= CFG['STEP0'] and i // CFG['STEP'] < CFG['STEP0'] + 4:
                stamp(A, sgrp)
            if i in hooks:
                hooks[i]()
            if fill and not self.wq and not self.xq and not fill_open and CFG['FBAR']:
                A('s_barrier')
                fill_open = True
            loads = self.take_x(i + DX - 1) + self.take_w(i + DW) if DW > DX else \
                self.take_w(i + DW) + self.take_x(i + DX - 1)
            rd = self.reads(i + 1)
            m = 0
            for st in range(2):
                for xb in range(2):
                    for wb in range(2):
                        acc = v(self.acc + (xb * 2 + wb) * 16, 16)
                        xf = a((i % DX) * 16 + (st * 2 + xb) * 4, 4)
                        wf = v(16 + (i % 2) * 16 + (st * 2 + wb) * 4, 4)
                        cin = '0' if (i == 0 and st == 0) else acc
                        if self.x_is_a:
                            A('v_mfma_f32_32x32x16_bf16 %s, %s, %s, %s' % (acc, xf, wf, cin))
                        else:
                            A('v_mfma_f32_32x32x16_bf16 %s, %s, %s, %s' % (acc, wf, xf, cin))
                        for _ in range(2):
                            if rd:
                                ins, tag = rd.pop(0)
                                A(ins, tag)
                        if loads:
                            emit(A, loads.pop(0))
                        elif fill and fill_open and not self.wq and not self.xq and m % fill_every == 0:
                            emit(A, fill.pop(0))
                        for _ in range(5):
                            if valu:
                                A(valu.pop(0))
                        m += 1
            assert not loads and not rd
        if n in hooks:
            hooks[n]()

    def reduce(self):
        A, ACC = self.A, self.acc
        A('v_add_u32 v16, s%d, v5' % self.slds)
        for q in range(1, 4):
            A('s_xor_b32 s5, s28, %d' % q)
            A('s_mul_i32 s5, s5, %d' % self.wave_stride)
            A('s_add_u32 s5, s5, %d' % self.base)
            A('v_add_u32 %s, s5, v5' % v(16 + q))
        for q in range(1, 4):
            for c in range(4):
                A('ds_write_b128 v16, %s offset:%d' % (v(ACC + q * 16 + c * 4, 4), self.ring(q - 1) + c * 1024), 'rw')
        A.wait(lg='rw')
        A('s_barrier')
        for q in range(1, 4):
            for c in range(4):
                A('ds_read_b128 %s, %s offset:%d' % (v(ACC + q * 16 + c * 4, 4), v(16 + q), self.ring(q - 1) + c * 1024),
                  ('rr', q))
        A.wait(lg=[('rr', 2)])
        for r in range(16):
            A('v_add_f32 %s, %s, %s' % (v(ACC + 16 + r), v(ACC + 16 + r), v(ACC + 32 + r)))
        A.wait(lg=[('rr', 3)])
        for r in range(16):
            A('v_add_f32 %s, %s, %s' % (v(ACC + r), v(ACC + r), v(ACC + 48 + r)))
        for r in range(16):
            A('v_add_f32 %s, %s, %s' % (v(ACC + r), v(ACC + r), v(ACC + 16 + r)))


V31, VH = 173, 174


def gemm_addr(A, g, perm_x, perm_w, t):
    vx, vw, vt = g.vx, g.vw, g.vt
    if perm_x:
        A('v_bfe_u32 %s, %s, 2, 1' % (v(vx), v(V31)))
        A('v_lshlrev_b32 %s, 4, %s' % (v(vx), v(vx)))
        A('v_and_b32 %s, 3, %s' % (v(t), v(V31)))
        A('v_add_u32 %s, %s, %s' % (v(vx), v(vx), v(t)))
        A('v_lshrrev_b32 %s, 3, %s' % (v(t), v(V31)))
        A('v_lshl_add_u32 %s, %s, 2, %s' % (v(vx), v(t), v(vx)))
        A('v_lshlrev_b32 %s, 4, %s' % (v(vx), v(vx)))
    else:
        A('v_lshlrev_b32 %s, 4, %s' % (v(vx), v(V31)))
    A('v_lshl_add_u32 %s, %s, 10, %s' % (v(vx), v(VH), v(vx)))
    A('s_lshr_b32 s5, s28, 1')
    A('s_lshl_b32 s5, s5, 9')
    A('v_or_b32 %s, s5, %s' % (v(vx), v(vx)))
    A('v_xor_b32 %s, 512, %s' % (v(vx + 1), v(vx)))
    A('v_lshrrev_b32 %s, 3, v2' % v(t))
    A('v_mul_u32_u24 %s, %d, %s' % (v(vw), g.wstride, v(t)))
    A('v_bfe_u32 %s, v2, 4, 1' % v(t))
    A('v_lshlrev_b32 %s, 2, %s' % (v(t), v(t)))
    A('v_and_b32 %s, 7, v2' % v(vw + 1))
    A('v_xor_b32 %s, %s, %s' % (v(t), v(t), v(vw + 1)))
    A('v_lshl_add_u32 %s, %s, 4, %s' % (v(vw), v(t), v(vw)))
    for q in range(1, 4):
        A('v_add_u32 %s, %d, %s' % (v(vw + q), q * (8 * g.wstride - 1024), v(vw)))
    A('v_bfe_u32 %s, v2, 2, 2' % v(t))
    A('v_lshl_add_u32 %s, %s, 3, %s' % (v(t), v(VH), v(t)))
    A('v_lshlrev_b32 %s, 7, %s' % (v(vt), v(t)))
    A('v_bfe_u32 %s, v2, 3, 1' % v(t))
    A('v_lshl_add_u32 %s, %s, 6, %s' % (v(vt), v(t), v(vt)))
    A('v_bfe_u32 %s, v2, 4, 1' % v(t))
    if perm_w:
        A('v_lshl_add_u32 %s, %s, 4, %s' % (v(vt), v(t), v(vt)))
        A('v_and_b32 %s, 1, v2' % v(t))
        A('v_lshl_add_u32 %s, %s, 5, %s' % (v(vt), v(t), v(vt)))
        A('v_bfe_u32 %s, v2, 1, 1' % v(t))
        A('v_lshl_add_u32 %s, %s, 3, %s' % (v(vt), v(t), v(vt)))
    else:
        A('v_lshl_add_u32 %s, %s, 5, %s' % (v(vt), v(t), v(vt)))
        A('v_and_b32 %s, 3, v2' % v(t))
        A('v_lshl_add_u32 %s, %s, 3, %s' % (v(vt), v(t), v(vt)))
    A('s_and_b32 s5, s28, 1')
    A('s_lshl_b32 s5, s5, 6')
    A('v_xor_b32 %s, s5, %s' % (v(vt), v(vt)))
    A('v_add_u32 %s, s%d, %s' % (v(vt), g.slds, v(vt)))
    A('v_xor_b32 %s, 64, %s' % (v(vt + 1), v(vt)))


def gen(A):
    A.raw('.globl %s' % KN)
    A.raw('.p2align 8')
    A.raw('.type %s,@function' % KN)
    A.label(KN)
    stamp(A, real=True)
    stamp(A)
    NS, SLOT = 4, 32768
    LDS_LN = NS * SLOT
    LN_STRIDE = 1088
    A('s_cmp_ge_u32 s2, 256')
    A('s_cbranch_scc1 k_end')
    for reg, off in ((SX, 0), (SWQ, 8), (SWS, 88), (SGW, 64), (SW1, 32), (SW2, 48), (SB1, 40), (SB2, 56), (SOUT, 72),
                     (SWO, 16)):
        A('s_load_dwordx2 %s, s[0:1], %d' % (s(reg, 2), off))
    if CFG['STAMPS']:
        A('v_mov_b32 %s, 0' % v(VST))
    A('v_lshrrev_b32 v1, 6, v0')
    A('v_and_b32 v2, 63, v0')
    A('v_readfirstlane_b32 s28, v1')
    srd(A, SX, 2048 * 512 * 2)
    srd(A, SWQ, 512 * 1536 * 2)
    srd(A, SWS, WS_SIZE)
    srd(A, SGW, 1024)
    A('s_and_b32 s3, s2, 7')
    A('s_lshr_b32 s4, s2, 3')
    A('s_lshr_b32 s5, s3, 1')
    A('s_lshl_b32 s5, s5, 3')
    A('s_and_b32 s6, s4, 7')
    A('s_add_u32 s30, s5, s6')
    A('s_and_b32 s5, s3, 1')
    A('s_lshl_b32 s5, s5, 2')
    A('s_lshr_b32 s7, s4, 3')
    A('s_add_u32 s31, s5, s7')
    if CFG['ROT1']:
        A('s_lshl_b32 s7, s7, 1')
        A('s_add_u32 s39, s6, s7')
        A('s_and_b32 s39, s39, 7')
    else:
        A('s_mov_b32 s39, 0')
    A('v_and_b32 v3, 15, v2')
    A('v_lshrrev_b32 v4, 4, v2')
    A('v_lshlrev_b32 v5, 4, v2')
    A('v_mov_b32 v1, 0')
    A('s_lshl_b32 s35, s30, 6')
    A('s_lshl_b32 s6, s31, 3')
    A('s_add_u32 s33, s35, s6')
    A('s_lshl_b32 s6, s28, 1')
    A('s_add_u32 s32, s33, s6')
    A('s_lshl_b32 s32, s32, 10')
    A('s_lshl_b32 s6, s28, 4')
    A('s_add_u32 s34, s35, s6')
    A('s_lshl_b32 s34, s34, 10')
    A('s_mul_i32 s36, s28, %d' % (16 * 3072))
    A('s_lshl_b32 s6, s31, 7')
    A('s_add_u32 s36, s36, s6')
    A('s_lshl_b32 s37, s28, 11')
    A('s_mul_i32 s38, s28, 6144')
    A('s_add_u32 s38, s38, 8192')
    A('s_mul_i32 s41, s39, %d' % (64 * 3072))
    A('s_add_u32 s41, s41, s36')
    A('s_mov_b32 s40, %d' % WS_E)
    A.wait_all(vm=False)
    LNA, LNB, LNG = 16, 20, 24
    A('buffer_load_dwordx4 %s, v5, %s, s32 offen' % (v(LNA, 4), s(SX, 4)), 'ln')
    A('buffer_load_dwordx4 %s, v5, %s, s32 offen offset:1024' % (v(LNB, 4), s(SX, 4)), 'ln')
    A('buffer_load_dwordx4 %s, v5, %s, 0 offen' % (v(LNG, 4), s(SGW, 4)), 'ln')
    A('buffer_load_dword %s, v1, %s, s40 offen sc1' % (v(VTAG), s(SWS, 4)), 'ln')
    def first_touches():
        A('v_min_u32 v176, 2, v4')
        A('v_mul_u32_u24 v177, 3072, v3')
        A('v_lshl_add_u32 v177, v176, 10, v177')
        A('v_and_b32 v176, 1, v4')
        A('v_add_u32 v176, s39, v176')
        A('v_and_b32 v176, 7, v176')
        A('v_lshlrev_b32 v176, 7, v176')
        A('v_lshl_add_u32 v176, v3, 10, v176')
        if CFG['T1']:
            A('buffer_load_dword v175, v177, %s, s41 offen' % s(SWQ, 4), 'pf')
            A('buffer_load_dword v175, v176, %s, s34 offen' % s(SX, 4), 'pf')
        if CFG['CODEPF']:
            A('s_getpc_b64 s[42:43]')
            A('s_lshl_b32 s5, s4, 10')
            A('s_lshl_b32 s6, s28, 8')
            A('s_add_u32 s5, s5, s6')
            A('v_and_b32 v178, 1, v2')
            A('v_lshlrev_b32 v178, 7, v178')
            A('v_add_u32 v178, s5, v178')
            A('v_min_u32 v178, CODE_SPAN, v178')
            A('global_load_dword v175, v178, s[42:43]', 'pf')

    if CFG['TPOS'] == 0:
        first_touches()
    for reg, size in ((SW1, 2048 * 1792 * 2), (SW2, 2048 * 1792 * 2), (SB1, 1792 * 2), (SB2, 2048 * 2),
                      (SOUT, 2048 * 512 * 2), (SWO, 512 * 512 * 2)):
        srd(A, reg, size)
    A('v_lshrrev_b32 v10, 3, v2')
    A('v_and_b32 v11, 7, v2')
    A('v_xor_b32 v14, v11, v4')
    A('v_lshlrev_b32 v6, 10, v10')
    A('v_lshl_add_u32 v6, v14, 4, v6')
    A('v_xor_b32 v7, 64, v6')
    A('v_add_u32 v7, 7168, v7')
    A('v_and_b32 v14, 1, v4')
    A('v_lshlrev_b32 v14, 1, v14')
    A('v_xor_b32 v14, v11, v14')
    A('v_mul_u32_u24 v8, 3072, v10')
    A('v_lshl_add_u32 v8, v14, 4, v8')
    A('v_xor_b32 v9, 64, v8')
    A('v_add_u32 v9, %d, v9' % (8 * 3072))
    A('v_lshrrev_b32 v14, 1, v3')
    A('v_xor_b32 v14, v14, v4')
    A('v_lshlrev_b32 v10, 7, v3')
    A('v_lshl_add_u32 v10, v14, 4, v10')
    A('v_xor_b32 v11, 64, v10')
    A('v_add_u32 v12, 0x10000, v10')
    A('v_add_u32 v13, 0x10000, v11')
    A('v_lshrrev_b32 v14, 2, v3')
    A('v_and_b32 v15, 3, v3')
    A('v_mul_u32_u24 v28, 3072, v4')
    A('v_lshl_add_u32 v28, v14, 7, v28')
    A('v_lshl_add_u32 v28, v15, 3, v28')
    A('v_bfe_u32 v29, v2, 3, 2')
    A('v_xor_b32 v29, s28, v29')
    A('v_lshl_add_u32 v28, v29, 5, v28')
    A('v_add_u32 v28, 8192, v28')
    A('v_add_u32 v29, 0x10000, v28')
    A('v_lshlrev_b32 v30, 2, v2')
    A('v_mul_u32_u24 v31, %d, v14' % LN_STRIDE)
    A('v_lshl_add_u32 v31, v4, 5, v31')
    A('v_lshl_add_u32 v31, v15, 3, v31')
    A('s_lshl_b32 s5, s28, 8')
    A('s_add_u32 s5, s5, %d' % LDS_LN)
    A('v_add_u32 v31, s5, v31')
    A('v_and_b32 %s, 31, v2' % v(V31))
    A('v_lshrrev_b32 %s, 5, v2' % v(VH))
    A('v_cmp_eq_u32 vcc, 0, v2')
    A('v_mov_b32 %s, %d' % (v(VL0), OOB))
    A('v_cndmask_b32 %s, %s, v1, vcc' % (v(VL0), v(VL0)))

    def chunk(c):
        sl = (c % NS) * SLOT
        out = []
        pre = ['s_add_u32 s40, s39, %d' % c, 's_and_b32 s40, s40, 7', 's_mul_i32 s41, s40, %d' % (64 * 3072),
               's_add_u32 s41, s41, s36', 's_lshl_b32 s40, s40, 7', 's_add_u32 s40, s40, s34']
        for j in range(2):
            pre.append('s_add_u32 m0, s38, %d' % (sl + j * 3072))
            for t in range(3):
                out.append((pre, 'buffer_load_dwordx4 %s, %s, s41 offen offset:%d%s lds'
                            % (v(8 + j), s(SWQ, 4), 1024 * t, ' nt' if (CFG['DEM1'] and c == 7) else ''), ('ch', c)))
                pre = []
        pre = ['s_add_u32 m0, s37, %d' % sl]
        for j in range(2):
            out.append((pre, 'buffer_load_dwordx4 %s, %s, s40 offen offset:%d%s lds'
                        % (v(6 + j), s(SX, 4), 1024 * j, ' nt' if (CFG['DEM1'] and c >= 6) else ''), ('ch', c)))
            pre = []
        return out

    if CFG['TPOS'] == 1:
        first_touches()
    early = sum([chunk(c) for c in range(CFG['PRE1'])], [])
    for _ in range(CFG['PRE0']):
        emit(A, early.pop(0))
    ring2 = lambda e: (e >> 1) * 32768 + (e & 1) * 4096
    G2 = Gemm(A, 'g2', 16, 3584, False, SW1, vx=136, vw=138, vt=142, sxb=64, swb=65, srot=66, slds=67, tmp=68,
              DW=CFG['DW2'], DX=CFG['DX2'], ring=ring2, acc=48, scls=80)
    G2.wave_stride = 8192
    G2.base = 0
    assert CFG['DW2'] <= 4
    ring3 = lambda e: e * 4096
    G3 = Gemm(A, 'g3', 14, 4096, True, SW2, vx=152, vw=154, vt=158, sxb=70, swb=71, srot=72, slds=73, tmp=74,
              DW=CFG['DW3'], DX=CFG['DX3'], ring=ring3, acc=48, scls=81)
    G3.wave_stride = CFG['DW3'] * 4096
    G3.base = 0x10000
    SD2, SF2, SD3, SS3 = 76, 77, 78, 79
    if CFG['MAP2'] == 0:
        A('s_and_b32 s5, s3, 1')
        A('s_lshl_b32 s5, s5, 2')
        A('s_and_b32 s6, s4, 3')
        A('s_add_u32 s%d, s5, s6' % SD2)
        A('s_lshr_b32 s5, s3, 1')
        A('s_mul_i32 s5, s5, 7')
        A('s_lshr_b32 s7, s4, 2')
        A('s_add_u32 s%d, s5, s7' % SF2)
        A('s_mul_i32 s66, s7, %d' % CFG['R2A'])
        A('s_lshr_b32 s66, s66, 3')
        A('s_mul_i32 s6, s6, %d' % CFG['R2B'])
    else:
        A('s_mul_i32 s5, s3, 28')
        A('s_add_u32 s5, s5, s4')
        A('s_and_b32 s%d, s5, 7' % SD2)
        A('s_lshr_b32 s%d, s5, 3' % SF2)
        A('s_add_u32 s66, s%d, %d' % (SF2, CFG['R2O']))
        A('s_and_b32 s66, s66, 3')
        A('s_mul_i32 s66, s66, %d' % CFG['R2A'])
        A('s_lshr_b32 s66, s66, 3')
        A('s_mul_i32 s6, s%d, %d' % (SD2, CFG['R2B']))
    A('s_add_u32 s66, s66, s6')
    A('s_and_b32 s66, s66, 15')
    A('s_and_b32 s80, s%d, %d' % (SF2, CFG['X2']))
    A('s_lshl_b32 s80, s80, %d' % CFG['XS2'])
    A('s_lshl_b32 s67, s28, 13')
    A('s_lshl_b32 s64, s%d, 18' % SD2)
    A('s_lshl_b32 s5, s28, 12')
    A('s_add_u32 s64, s64, s5')
    if WS_HT:
        A('s_add_u32 s64, s64, %d' % WS_HT)
    A('s_mul_i32 s65, s28, %d' % (32 * 3584))
    A('s_lshl_b32 s5, s%d, 7' % SF2)
    A('s_add_u32 s65, s65, s5')
    gemm_addr(A, G2, False, True, 1)
    if CFG['MAP3'] == 0:
        A('s_and_b32 s%d, s4, 7' % SD3)
        A('s_lshl_b32 s5, s3, 2')
        A('s_lshr_b32 s6, s4, 3')
        A('s_add_u32 s%d, s5, s6' % SS3)
        A('s_mov_b32 s7, s%d' % SD3)
    else:
        A('s_and_b32 s5, s3, 1')
        A('s_lshl_b32 s5, s5, 2')
        A('s_and_b32 s7, s4, 3')
        A('s_add_u32 s%d, s5, s7' % SD3)
        A('s_lshr_b32 s5, s3, 1')
        A('s_lshl_b32 s5, s5, 3')
        A('s_lshr_b32 s6, s4, 2')
        A('s_add_u32 s%d, s5, s6' % SS3)
    A('s_and_b32 s81, s6, %d' % CFG['X3'])
    A('s_mul_i32 s72, s6, %d' % CFG['R3A'])
    A('s_mul_i32 s5, s7, %d' % CFG['R3B'])
    A('s_add_u32 s72, s72, s5')
    A('s_lshr_b32 s72, s72, 3')
    A('s_sub_u32 s5, s72, 14')
    A('s_cmp_ge_u32 s72, 14')
    A('s_cselect_b32 s72, s5, s72')
    A('s_mul_i32 s73, s28, %d' % G3.wave_stride)
    A('s_add_u32 s73, s73, 0x10000')
    A('s_mul_i32 s70, s%d, %d' % (SD3, UM_TILE))
    A('s_lshl_b32 s5, s28, 12')
    A('s_add_u32 s70, s70, s5')
    A('s_add_u32 s70, s70, %d' % WS_UM)
    A('s_lshl_b32 s71, s28, 17')
    A('s_lshl_b32 s5, s%d, 7' % SS3)
    A('s_add_u32 s71, s71, s5')
    gemm_addr(A, G3, True, False, 1)
    A('v_lshlrev_b32 v160, 4, %s' % v(V31))
    A('v_lshl_add_u32 v160, %s, 10, v160' % v(VH))
    A('s_and_b32 s6, s28, 1')
    A('s_lshl_b32 s7, s6, 9')
    A('v_or_b32 v160, s7, v160')
    A('v_xor_b32 v161, 512, v160')
    A('s_lshl_b32 s7, s6, 5')
    A('v_or_b32 v162, s7, %s' % v(V31))

    if CFG['TPOS'] == 2:
        first_touches()

    for _ in range(CFG['PRE0B']):
        emit(A, early.pop(0))
    A.wait(vm='ln')
    stamp(A, 1)
    A.sprinkle(early, CFG['SPR1'])
    A('v_readfirstlane_b32 s%d, %s' % (ST, v(VTAG)))
    XA, XBb, GW = 32, 40, 48
    unpack(A, LNA, 4, XA)
    unpack(A, LNB, 4, XBb)
    unpack(A, LNG, 4, GW)
    A('s_mul_i32 s%d, s%d, 0x9E3779B1' % (ST, ST))
    A('s_add_u32 s%d, s%d, 0x7F4A7C15' % (ST, ST))
    A('v_mov_b32 %s, s%d' % (v(VTAG), ST))
    SA, SB, DA, DB = 56, 57, 58, 59
    A('v_add_f32 %s, %s, %s' % (v(SA), v(XA), v(XA + 1)))
    A('v_add_f32 %s, %s, %s' % (v(SB), v(XBb), v(XBb + 1)))
    A('v_mul_f32 %s, %s, %s' % (v(DA), v(XA), v(GW)))
    A('v_mul_f32 %s, %s, %s' % (v(DB), v(XBb), v(GW)))
    for i in range(1, 8):
        if i >= 2:
            A('v_add_f32 %s, %s, %s' % (v(SA), v(SA), v(XA + i)))
            A('v_add_f32 %s, %s, %s' % (v(SB), v(SB), v(XBb + i)))
        A('v_fmac_f32 %s, %s, %s' % (v(DA), v(XA + i), v(GW + i)))
        A('v_fmac_f32 %s, %s, %s' % (v(DB), v(XBb + i), v(GW + i)))
    allreduce(A, [SA, SB, DA, DB], [60, 61, 62, 63])
    A('v_mul_f32 %s, %s, %s' % (v(SA), f32(1 / 512), v(SA)))
    A('v_mul_f32 %s, %s, %s' % (v(SB), f32(1 / 512), v(SB)))
    for i in range(8):
        A('v_sub_f32 %s, %s, %s' % (v(XA + i), v(XA + i), v(SA)))
        A('v_sub_f32 %s, %s, %s' % (v(XBb + i), v(XBb + i), v(SB)))
    A('v_mul_f32 %s, %s, %s' % (v(SA), v(XA), v(XA)))
    A('v_mul_f32 %s, %s, %s' % (v(SB), v(XBb), v(XBb)))
    for i in range(1, 8):
        A('v_fmac_f32 %s, %s, %s' % (v(SA), v(XA + i), v(XA + i)))
        A('v_fmac_f32 %s, %s, %s' % (v(SB), v(XBb + i), v(XBb + i)))
    allreduce(A, [SA, SB], [60, 61])
    A('v_mov_b32 v60, %s' % f32(1e-5))
    A('v_fmamk_f32 %s, %s, %s, v60' % (v(SA), v(SA), f32(1 / 512)))
    A('v_fmamk_f32 %s, %s, %s, v60' % (v(SB), v(SB), f32(1 / 512)))
    A('v_rsq_f32 %s, %s' % (v(SA), v(SA)))
    A('v_rsq_f32 %s, %s' % (v(SB), v(SB)))
    A('v_cndmask_b32 %s, %s, %s, vcc' % (v(DA), v(DB), v(DA)))
    A('v_mul_f32 %s, %s, %s' % (v(DA), f32(-LOG2E), v(DA)))
    A('v_exp_f32 %s, %s' % (v(DA), v(DA)))
    for i in range(8):
        A('v_mul_f32 %s, %s, %s' % (v(XA + i), v(XA + i), v(SA)))
        A('v_mul_f32 %s, %s, %s' % (v(XBb + i), v(XBb + i), v(SB)))
    A('v_add_f32 %s, 1.0, %s' % (v(DA), v(DA)))
    A('v_rcp_f32 v24, %s' % v(DA))
    for i in range(4):
        A('v_cvt_pk_bf16_f32 %s, %s, %s' % (v(LNA + i), v(XA + 2 * i), v(XA + 2 * i + 1)))
        A('v_cvt_pk_bf16_f32 %s, %s, %s' % (v(LNB + i), v(XBb + 2 * i), v(XBb + 2 * i + 1)))
    A('s_mul_i32 s5, s28, %d' % (2 * LN_STRIDE))
    A('s_add_u32 s5, s5, %d' % LDS_LN)
    A('v_add_u32 v60, s5, v5')
    A('ds_write_b128 v60, %s' % v(LNA, 4), 'lnw')
    A('ds_write_b128 v60, %s offset:%d' % (v(LNB, 4), LN_STRIDE), 'lnw')
    A.flush_sprinkle()
    stamp(A, 1)
    FB = [32, 60]
    ACC1 = 88
    HTR = 16

    def reads(ks):
        c, kk = ks // 2, ks % 2
        sl = c % NS
        hi = 1 if sl >= 2 else 0
        so = (sl % 2) * SLOT
        out = []
        for kind, n in [('w', 0), ('x', 0), ('x', 1), ('x', 2), ('x', 3), ('w', 1), ('w', 2)]:
            if kind == 'x':
                out.append(('ds_read_b128 %s, %s offset:%d' % (v(FB[kk] + n * 4, 4), v(10 + kk + 2 * hi), so + n * 2048),
                            ('f', ks, 'x', n)))
            else:
                for sec in range(2):
                    out.append(('ds_read_b64_tr_b16 %s, %s offset:%d'
                                % (v(FB[kk] + 16 + n * 4 + sec * 2, 2), v(28 + hi), so + kk * 12288 + n * 1024 + sec * 512),
                                ('f', ks, 'w', n)))
        return out

    pf1 = []
    if CFG['PF1']:
        pre = ['v_mul_u32_u24 v25, 3584, v2', 's_mul_i32 s42, s4, %d' % (64 * 3584)]
        if CFG['MAP2'] == 0:
            pre += ['s_lshr_b32 s43, s3, 1', 's_mul_i32 s43, s43, 896']
        else:
            pre += ['s_mul_i32 s43, s3, 7', 's_lshr_b32 s43, s43, 1', 's_lshl_b32 s43, s43, 7']
        pre += ['s_add_u32 s42, s42, s43', 's_lshl_b32 s43, s28, 7', 's_add_u32 s42, s42, s43']
        pf1.append((pre, 'buffer_load_dword v175, v25, %s, s42 offen' % s(SW1, 4), 'pf'))
        if CFG['MAP2'] == 0:
            pre = ['s_add_u32 s43, s42, 512', 's_cmp_ge_u32 s28, 3', 's_cselect_b32 s43, s42, s43']
            pf1.append((pre, 'buffer_load_dword v175, v25, %s, s43 offen' % s(SW1, 4), 'pf'))

    LA = CFG['LA1']
    loads = sum([chunk(c) for c in range(CFG['PRE1'], LA)], [])

    def p1_steps(k0, k1, extra):
        for ks in range(k0, k1):
            c, kk = ks // 2, ks % 2
            if kk == 1 and c < 7:
                while any(it[2] == ('ch', c + 1) for it in loads):
                    emit(A, loads.pop(0))
                A.wait(vm=[('ch', c + 1)] + (['st1'] if ks == CFG['F1AT'] else []), lg=[('f', ks, 'w', 2)])
                A('s_barrier')
                if c in (1, 4):
                    stamp(A, 1)
                if ks == CFG['F1AT']:
                    A('s_lshl_b32 s5, s33, 4')
                    A('s_add_u32 s5, s5, %d' % WS_F1)
                    A('s_cmp_eq_u32 s28, 0')
                    A('s_cselect_b32 s5, s5, %d' % OOB)
                    emit(A, flag_store('s5'))
                if c + LA < 8:
                    loads.extend(chunk(c + LA))
                if c == CFG['PF1AT']:
                    loads.extend(pf1)
            for it in extra.get(ks, []):
                if callable(it):
                    it()
                else:
                    loads.append(it)
            nxt = reads(ks + 1) if ks < 15 else []
            for t in range(3):
                for tb in range(4):
                    A.wait(lg=[('f', ks, 'w', t), ('f', ks, 'x', tb)])
                    acc = v(ACC1 + (t * 4 + tb) * 4, 4)
                    wf = v(FB[kk] + 16 + t * 4, 4)
                    xf = v(FB[kk] + tb * 4, 4)
                    c_in = '0' if ks == 0 else acc
                    if t == 0:
                        A('v_mfma_f32_16x16x32_bf16 %s, %s, %s, %s' % (acc, wf, xf, c_in))
                    else:
                        A('v_mfma_f32_16x16x32_bf16 %s, %s, %s, %s' % (acc, xf, wf, c_in))
                    if nxt and not (t == 0 and tb < 2 and kk == 0):
                        ins, tag = nxt.pop(0)
                        A(ins, tag)
                    if loads and (tb % 2 == 1 or len(loads) > 8):
                        emit(A, loads.pop(0))
            assert not nxt
            if ks == 0:
                for rnd in range(2):
                    for sec in range(2):
                        A('ds_read_b64_tr_b16 %s, v31 offset:%d'
                          % (v(HTR + rnd * 4 + sec * 2, 2), rnd * 128 + sec * 4 * LN_STRIDE), 'htr')
                A('s_lshr_b32 s5, s32, 8')
                A('s_add_u32 s5, s5, %d' % WS_G)
                A('s_mov_b64 exec, 3')
                A('buffer_store_dword v24, v30, %s, s5 offen sc1' % s(SWS, 4), 'st1')
                A('s_mov_b64 exec, -1')
                A('s_lshl_b32 s5, s28, 19')
                A('s_lshl_b32 s6, s33, 7')
                A('s_add_u32 s5, s5, s6')
                if WS_HT:
                    A('s_add_u32 s5, s5, %d' % WS_HT)
                A('s_add_u32 s6, s5, 0x40000')
                A.wait(lg='htr')
                A('buffer_store_dwordx4 %s, v5, %s, s5 offen sc1' % (v(HTR, 4), s(SWS, 4)), 'st1')
                A('buffer_store_dwordx4 %s, v5, %s, s6 offen sc1' % (v(HTR + 4, 4), s(SWS, 4)), 'st1')

    def accr(t, tb):
        return [ACC1 + (t * 4 + tb) * 4 + r for r in range(4)]

    def p1_epilogue(after_st=None):
        A('s_lshl_b32 s43, s31, 2')
        A('s_add_u32 s43, s43, s28')
        A('s_lshl_b32 s43, s43, 5')
        A('s_add_u32 s43, s43, s30')
        A('s_lshl_b32 s41, s43, 10')
        A('s_add_u32 s41, s41, %d' % WS_KVP)
        A('s_lshl_b32 s42, s43, 6')
        A('s_add_u32 s42, s42, %d' % WS_ZP)
        A('s_lshl_b32 s43, s43, 7')
        A('s_add_u32 s43, s43, %d' % WS_F2)
        ONE = 84
        kregs = sum([accr(1, tb) for tb in range(4)], [])
        vregs = sum([accr(2, tb) for tb in range(4)], [])
        qregs = sum([accr(0, tb) for tb in range(4)], [])
        phi(A, kregs, list(range(32, 48)))
        for q in range(4):
            A('v_mov_b32 %s, 0x3f803f80' % v(ONE + q))
        PK, VV = 48, 56
        for q in range(8):
            A('v_cvt_pk_bf16_f32 %s, %s, %s' % (v(PK + q), v(kregs[2 * q]), v(kregs[2 * q + 1])))
            A('v_cvt_pk_bf16_f32 %s, %s, %s' % (v(VV + q), v(vregs[2 * q]), v(vregs[2 * q + 1])))
        KV, ZZ = 112, 116
        for j in range(2):
            A('v_mfma_f32_16x16x32_bf16 %s, %s, %s, %s'
              % (v(KV, 4), v(VV + 4 * j, 4), v(PK + 4 * j, 4), '0' if j == 0 else v(KV, 4)))
            A('v_mfma_f32_16x16x32_bf16 %s, %s, %s, %s'
              % (v(ZZ, 4), v(ONE, 4), v(PK + 4 * j, 4), '0' if j == 0 else v(ZZ, 4)))
        A.flush_sprinkle()
        A('s_mov_b64 exec, 0xffff')
        A('buffer_store_dword %s, v30, %s, s42 offen sc1' % (v(ZZ), s(SWS, 4)), 'st2')
        A('s_mov_b64 exec, -1')
        A('buffer_store_dwordx4 %s, v5, %s, s41 offen sc1' % (v(KV, 4), s(SWS, 4)), 'st2')
        if after_st is not None:
            after_st()
        for r, t_ in zip(qregs, range(32, 48)):
            A('v_mul_f32 %s, %s, %s' % (v(t_), f32(LOG2E), v(r)))
        for r, t_ in zip(qregs, range(32, 48)):
            A('v_exp_f32_e64 %s, %s clamp' % (v(t_), v(t_)))
            A('v_max_f32 %s, 0, %s' % (v(r), v(r)))
        for r, t_ in zip(qregs, range(32, 48)):
            A('v_add_f32 %s, %s, %s' % (v(r), v(r), v(t_)))
        for n_, r in enumerate(qregs):
            A('v_add_f32 %s, %s, %s' % (v(PQK + n_), f32(1e-6), v(r)))

    PQK = 176
    PZ = 192

    def pp_stage1():
        A('s_lshr_b32 s40, s43, 12')
        A('s_lshl_b32 s40, s40, 12')
        A('v_lshlrev_b32 %s, 7, %s' % (v(VPA), v(V31)))
        A('v_add_u32 %s, s40, %s' % (v(VPA), v(VPA)))
        A('s_lshl_b32 s40, s30, 10')
        A('s_add_u32 s40, s40, %d' % WS_F1)
        A('v_and_b32 v1, 7, v2')
        A('v_lshlrev_b32 v1, 7, v1')
        A('v_add_u32 v1, s40, v1')
        A('v_cmp_gt_u32 vcc, 32, v2')
        A('v_cndmask_b32 %s, v1, %s, vcc' % (v(VPA), v(VPA)))
        emit(A, poll_issue('0', 'p2'))

    def pp_loads():
        pre = ['v_lshlrev_b32 v224, 6, v3', 'v_lshl_add_u32 v224, v4, 4, v224', 's_lshr_b32 s41, s42, 11',
               's_lshl_b32 s41, s41, 11', 'v_lshlrev_b32 v225, 2, v3', 's_lshl_b32 s42, s35, 2',
               's_add_u32 s42, s42, %d' % WS_G]
        out = [(pre, 'buffer_load_dwordx4 %s, v224, %s, s41 offen sc1' % (v(PZ, 4), s(SWS, 4)), 'pz'),
               ([], 'buffer_load_dwordx4 %s, v224, %s, s41 offen offset:1024 sc1' % (v(PZ + 4, 4), s(SWS, 4)), 'pz')]
        for tb in range(4):
            out.append(([], 'buffer_load_dword %s, v225, %s, s42 offen offset:%d sc1' % (v(PZ + 8 + tb), s(SWS, 4), tb * 64),
                        'pz'))
        return out

    def pp_compute():
        L = []
        Z, GG, DEN, TT, OUT = PZ, PZ + 8, PZ + 12, PZ + 16, PZ + 20
        for r in range(4):
            L.append('v_add_f32 %s, %s, %s' % (v(Z + r), v(Z + r), v(Z + 4 + r)))
        for mod in ('quad_perm:[1,0,3,2]', 'quad_perm:[2,3,0,1]', 'row_half_mirror', 'row_mirror'):
            for r in range(4):
                L.append('v_add_f32_dpp %s, %s, %s %s row_mask:0xf bank_mask:0xf' % (v(Z + r), v(Z + r), v(Z + r), mod))
        for tb in range(4):
            L.append('v_mul_f32 %s, %s, %s' % (v(DEN + tb), v(PQK + 4 * tb), v(Z)))
        for r in range(1, 4):
            for tb in range(4):
                L.append('v_fmac_f32 %s, %s, %s' % (v(DEN + tb), v(PQK + 4 * tb + r), v(Z + r)))
        for ins in ('v_permlane16_swap_b32', 'v_permlane32_swap_b32'):
            for tb in range(4):
                L.append('v_mov_b32 %s, %s' % (v(TT + tb), v(DEN + tb)))
            for tb in range(4):
                L.append('%s %s, %s' % (ins, v(DEN + tb), v(TT + tb)))
            for tb in range(4):
                L.append('v_add_f32 %s, %s, %s' % (v(DEN + tb), v(DEN + tb), v(TT + tb)))
        for tb in range(4):
            L.append('v_add_f32 %s, %s, %s' % (v(DEN + tb), f32(1e-6), v(DEN + tb)))
        for tb in range(4):
            L.append('v_rcp_f32 %s, %s' % (v(DEN + tb), v(DEN + tb)))
        for tb in range(4):
            L.append('v_mul_f32 %s, %s, %s' % (v(DEN + tb), v(DEN + tb), v(GG + tb)))
        for tb in range(4):
            for r in range(4):
                L.append('v_mul_f32 %s, %s, %s' % (v(PQK + 4 * tb + r), v(PQK + 4 * tb + r), v(DEN + tb)))
        for tb in range(4):
            for d in range(2):
                L.append('v_cvt_pk_bf16_f32 %s, %s, %s' % (v(OUT + 2 * tb + d), v(PQK + 4 * tb + 2 * d), v(PQK + 4 * tb + 2 * d + 1)))
        L += ['v_lshrrev_b32 v224, 1, v4', 'v_lshlrev_b32 v224, 10, v224', 'v_lshl_add_u32 v224, v3, 4, v224',
              'v_and_b32 v225, 1, v4', 'v_lshl_add_u32 v224, v225, 8, v224']
        for p_ in range(2):
            for d in range(2):
                L.append('v_permlane16_swap_b32 %s, %s' % (v(OUT + 4 * p_ + d), v(OUT + 4 * p_ + 2 + d)))
        pre = ['s_lshl_b32 s41, s30, 16', 's_lshl_b32 s42, s31, 13', 's_add_u32 s41, s41, s42', 's_lshl_b32 s42, s28, 11',
               's_add_u32 s41, s41, s42', 's_add_u32 s41, s41, %d' % WS_PP, 's_add_u32 s40, s43, %d' % (WS_F5 - WS_F2)]
        S = [(pre, 'buffer_store_dwordx4 %s, v224, %s, s41 offen sc1' % (v(OUT, 4), s(SWS, 4)), 'st5'),
             ([], 'buffer_store_dwordx4 %s, v224, %s, s41 offen offset:512 sc1' % (v(OUT + 4, 4), s(SWS, 4)), 'st5')]
        return L, S

    def f1_addr():
        A('v_lshrrev_b32 %s, 2, v2' % v(VPA))
        A('v_lshlrev_b32 %s, 11, %s' % (v(VPA), v(VPA)))
        A('v_and_b32 v1, 3, v2')
        A('v_lshl_add_u32 %s, v1, 7, %s' % (v(VPA), v(VPA)))
        A('s_lshl_b32 s34, s28, 9')
        A('s_add_u32 s34, s34, %d' % WS_F1)

    def apart_items():
        out = []
        for jj in range(4):
            pre = ['s_add_u32 s36, s%d, s%d' % (SD3, SS3), 's_add_u32 s36, s36, %d' % jj, 's_and_b32 s36, s36, 3',
                   's_lshl_b32 s36, s36, 14', 's_add_u32 s37, s36, s38', 's_add_u32 s36, s36, s70',
                   's_add_u32 s36, s36, %d' % (14 * 16384)]
            for st in range(2):
                for b in range(2):
                    out.append((pre, 'buffer_load_dwordx4 %s, %s, %s, s36 offen offset:%d sc1'
                                % (a(128 + jj * 16 + (st * 2 + b) * 4, 4), v(152 + b), s(SWS, 4), st * 2048), ('ap', jj)))
                    pre = []
                    out.append(([], 'buffer_load_dwordx4 %s, %s, %s, s37 offen offset:%d sc1'
                                % (a(192 + jj * 16 + (st * 2 + b) * 4, 4), v(160 + b), s(SWS, 4), st * 2048), ('ap', jj)))
        pre = ['v_lshlrev_b32 v163, 2, v162', 'v_xor_b32 v164, 128, v163', 'v_lshlrev_b32 v165, 1, v162',
               's_lshl_b32 s36, s%d, 8' % SS3, 's_add_u32 s36, s36, %d' % WS_G, 's_lshl_b32 s37, s%d, 7' % SS3]
        out.append((pre, 'buffer_load_dword v166, v163, %s, s36 offen sc1' % s(SWS, 4), 'g'))
        out.append(([], 'buffer_load_dword v167, v164, %s, s36 offen sc1' % s(SWS, 4), 'g'))
        out.append(([], 'buffer_load_ushort v168, v165, %s, s37 offen' % s(SB2, 4), 'g'))
        return out

    def f3_addr():
        A('v_bfe_u32 %s, v2, 1, 2' % v(VPA))
        A('v_lshlrev_b32 %s, 3, %s' % (v(VPA), v(VPA)))
        A('v_and_b32 v1, 1, v2')
        A('v_add_u32 %s, %s, v1' % (v(VPA), v(VPA)))
        A('s_lshl_b32 s5, s28, 1')
        A('v_add_u32 %s, s5, %s' % (v(VPA), v(VPA)))
        A('v_lshlrev_b32 v1, 7, %s' % v(VPA))
        A('v_lshlrev_b32 %s, 12, %s' % (v(VPA), v(VPA)))
        A('s_lshl_b32 s5, s%d, 7' % SS3)
        A('s_add_u32 s5, s5, %d' % (WS_F5 - WS_F3))
        A('v_add_u32 %s, s5, %s' % (v(VPA), v(VPA)))
        A('v_and_b32 %s, 8, v2' % v(VPD))
        A('v_cmp_eq_u32 vcc, 0, %s' % v(VPD))
        A('v_cndmask_b32 %s, %s, v1, vcc' % (v(VPA), v(VPA)))
        A('s_mov_b32 s34, %d' % WS_F3)
        A('s_lshl_b32 s38, s%d, 16' % SS3)
        A('s_lshl_b32 s5, s28, 12')
        A('s_add_u32 s38, s38, s5')
        A('s_add_u32 s38, s38, %d' % WS_PP)

    A.wait(vm=[('ch', 0)], lg=['lnw'])
    A('s_barrier')
    stamp(A, 1)
    for ins, tag in reads(0):
        A(ins, tag)
    SPLIT = max(9, 2 * (7 - LA) + 3)
    p1_steps(0, SPLIT, {})
    A('s_cmp_ge_u32 s4, 28')
    A('s_cbranch_scc1 spare')
    assert not loads
    snap = (list(A.vm), list(A.lg), list(loads), STAMP['n'])
    bias = [(['v_lshlrev_b32 v1, 5, %s' % v(VH), 's_lshl_b32 s5, s%d, 7' % SF2, 's_and_b32 s6, s28, 1',
              's_lshl_b32 s6, s6, 6', 's_add_u32 s32, s5, s6'],
             'buffer_load_dwordx4 v[144:147], v1, %s, s32 offen' % s(SB1, 4), 'b'),
            ([], 'buffer_load_dwordx4 v[148:151], v1, %s, s32 offen offset:16' % s(SB1, 4), 'b')]
    if CFG['EARLY2']:
        extra = {9: [f1_addr, poll_issue('s34', 'p1')] + G2.take_w(0) + G2.take_w(1),
                 11: G2.take_w(2) + G2.take_w(3) + bias,
                 13: [lambda: poll_check(A, 's34', 'p1', 'f1')] + G2.take_x(0) + G2.take_x(1) + G2.take_x(2)}
    else:
        extra = {SPLIT: sum([G2.take_w(j) for j in range(CFG['EW'])], [])}
    p1_steps(SPLIT, 16, extra)
    stamp(A, 1)
    A.sprinkle(list(loads), CFG['SPRE'])
    del loads[:]

    def after_st():
        f1_addr()
        emit(A, poll_issue('s34', 'p1'))
        for it in bias:
            emit(A, it)
        for j in range(CFG['W2E']):
            for it in G2.take_w(j):
                emit(A, it)
    p1_epilogue(None if CFG['EARLY2'] else after_st)
    stamp(A)
    A.wait(vm='st2')
    emit(A, flag_store('s43'))
    stamp(A)
    flush(A, 22)
    if not CFG['EARLY2']:
        poll_check(A, 's34', 'p1', 'f1')

    fill = []
    late = []
    hooks = {}

    valu = []
    PA = CFG['PPAT']
    hooks[PA] = pp_stage1

    def h_pp2():
        poll_check(A, '0', 'p2', 'f2m')
        for it in pp_loads():
            emit(A, it)
    hooks[PA + 1] = h_pp2
    ppL, ppS = pp_compute()

    def h_pp3():
        A.wait(vm='pz')
        valu.extend(ppL)
    hooks[PA + 2] = h_pp3

    def h_pp4():
        assert not valu
        for it in ppS:
            emit(A, it)
    hooks[PA + 5] = h_pp4

    def h_pp5():
        A.wait(vm='st5')
        emit(A, flag_store('s40'))
    hooks[PA + 6] = h_pp5

    def w2_touch():
        out = []
        pre = ['v_lshlrev_b32 v1, 12, v2', 's_min_u32 s36, s4, 27', 's_lshl_b32 s36, s36, 18']
        if CFG['MAP3'] == 0:
            pre += ['s_lshl_b32 s37, s3, 9']
        else:
            pre += ['s_lshr_b32 s37, s3, 1', 's_lshl_b32 s37, s37, 10']
        pre += ['s_add_u32 s36, s36, s37', 's_lshl_b32 s37, s28, 7', 's_add_u32 s36, s36, s37']
        for off in ((0,) if CFG['MAP3'] == 0 else (0, 512)):
            out.append((pre, 'buffer_load_dword v175, v1, %s, s36 offen offset:%d' % (s(SW2, 4), off), 'pf'))
            pre = []
        return out

    if CFG['PF2'] == 2:
        fill.extend(w2_touch())
    early3 = sum([G3.take_w(j) for j in range(CFG['EW3'])], [])
    fill.extend(early3)

    def h_f3a():
        f3_addr()
        emit(A, poll_issue('s34', 'p3'))

    def h_f3b():
        poll_check(A, 's34', 'p3', 'f3')
        ai = apart_items()
        fill.extend(ai[:CFG['FILLN']])
        late.extend(ai[CFG['FILLN']:])
    if CFG['FILLN']:
        hooks[CFG['F3AT']] = h_f3a
        hooks[CFG['F3AT'] + 2] = h_f3b
    G2.run(fill=fill, hooks=hooks, fill_every=CFG['FILL2'], sgrp=2, valu=valu)
    stamp(A)
    for it in fill:
        emit(A, it)
    if not CFG['FILLN']:
        h_f3a()
    mid3 = []
    for j in range(CFG['EW3'], CFG['EW3B']):
        mid3 += G3.take_w(j)
    early3 += mid3
    G2.reduce()
    A.sprinkle(mid3, CFG['SPRE'])
    ACC = 48
    A.wait(vm='b')
    BF = 16
    unpack(A, 144, 8, BF)
    T = 64
    c2 = -2.0 * math.sqrt(2.0 / math.pi) * LOG2E
    A('v_mov_b32 v32, %s' % f32(c2))
    for r in range(16):
        A('v_add_f32 %s, %s, %s' % (v(ACC + r), v(ACC + r), v(BF + r)))
    for r in range(16):
        A('v_mul_f32 %s, %s, %s' % (v(T + r), v(ACC + r), v(ACC + r)))
    for r in range(16):
        A('v_fmamk_f32 %s, %s, %s, v32' % (v(T + r), v(T + r), f32(c2 * 0.044715)))
    for r in range(16):
        A('v_mul_f32 %s, %s, %s' % (v(T + r), v(T + r), v(ACC + r)))
    for r in range(16):
        A('v_exp_f32 %s, %s' % (v(T + r), v(T + r)))
    for r in range(16):
        A('v_add_f32 %s, 1.0, %s' % (v(T + r), v(T + r)))
    for r in range(16):
        A('v_rcp_f32 %s, %s' % (v(T + r), v(T + r)))
    for r in range(16):
        A('v_mul_f32 %s, %s, %s' % (v(T + r), v(T + r), v(ACC + r)))
    rest = A.sprq
    A.sprq = []
    for q in range(8):
        A('v_cvt_pk_bf16_f32 %s, %s, %s' % (v(112 + q), v(T + 2 * q), v(T + 2 * q + 1)))
    A('v_lshlrev_b32 v1, 4, %s' % v(V31))
    A('v_lshl_add_u32 v1, %s, 11, v1' % v(VH))
    A('s_mul_i32 s5, s%d, %d' % (SD2, UM_TILE))
    A('s_lshl_b32 s6, s%d, 13' % SF2)
    A('s_add_u32 s5, s5, s6')
    A('s_and_b32 s6, s28, 1')
    A('s_lshl_b32 s6, s6, 12')
    A('s_add_u32 s5, s5, s6')
    A('s_lshr_b32 s6, s28, 1')
    A('s_lshl_b32 s6, s6, 9')
    A('s_add_u32 s5, s5, s6')
    A('s_add_u32 s5, s5, %d' % WS_UM)
    A('buffer_store_dwordx4 v[112:115], v1, %s, s5 offen sc1' % s(SWS, 4), 'st4')
    A('buffer_store_dwordx4 v[116:119], v1, %s, s5 offen offset:1024 sc1' % s(SWS, 4), 'st4')
    stamp(A)
    A('s_lshl_b32 s43, s%d, 5' % SD2)
    A('s_add_u32 s43, s43, s%d' % SF2)
    A('s_lshl_b32 s43, s43, 2')
    A('s_add_u32 s43, s43, s28')
    A('s_lshl_b32 s43, s43, 7')
    A('s_add_u32 s43, s43, %d' % WS_F4)
    if not CFG['FILLN']:
        h_f3b()
    rest = rest + late
    for _ in range(CFG['POST4']):
        if rest:
            emit(A, rest.pop(0))
    A.wait(vm='st4')
    emit(A, flag_store('s43'))
    stamp(A)
    for it in rest:
        emit(A, it)
    flush(A, 38)
    A.label('join')
    pre3 = w2_touch() if CFG['PF2'] == 1 else []
    for j in range(CFG['DW3']):
        pre3 += G3.take_w(j)
    ACA = 176
    for it in pre3:
        emit(A, it)
    A('v_min_u32 v1, 27, v2')
    A('v_lshrrev_b32 %s, 1, v1' % v(VPA))
    A('v_lshlrev_b32 %s, 10, %s' % (v(VPA), v(VPA)))
    A('v_and_b32 v1, 1, v1')
    A('v_lshl_add_u32 %s, v1, 8, %s' % (v(VPA), v(VPA)))
    A('s_lshl_b32 s34, s%d, 14' % SD3)
    A('s_lshr_b32 s5, s28, 1')
    A('s_lshl_b32 s5, s5, 9')
    A('s_add_u32 s34, s34, s5')
    A('s_and_b32 s5, s28, 1')
    A('s_lshl_b32 s5, s5, 7')
    A('s_add_u32 s34, s34, s5')
    A('s_add_u32 s34, s34, %d' % WS_F4)
    stamp(A)
    emit(A, poll_issue('s34', 'p4'))
    xq = []
    for jj in range(4):
        if jj == CFG['F4AT']:
            poll_check(A, 's34', 'p4', 'f4')
            stamp(A)
            xq = sum([G3.take_x(j) for j in range(CFG['DX3'] - 1)], [])
        A.wait(vm=[('ap', jj)])
        for st in range(2):
            for xb in range(2):
                for wb in range(2):
                    acc = v(ACA + (xb * 2 + wb) * 16, 16)
                    if xq:
                        emit(A, xq.pop(0))
                    A('v_mfma_f32_32x32x16_bf16 %s, %s, %s, %s'
                      % (acc, a(128 + jj * 16 + (st * 2 + xb) * 4, 4), a(192 + jj * 16 + (st * 2 + wb) * 4, 4),
                         '0' if (jj == 0 and st == 0) else acc))
    for it in xq:
        emit(A, it)
    G3.run(sgrp=3)
    stamp(A)
    A.wait(vm='g')
    A('v_sub_f32 v166, 1.0, v166')
    A('v_sub_f32 v167, 1.0, v167')
    A('v_lshlrev_b32 v168, 16, v168')
    A('v_mul_f32 v168, v168, v166')
    for q in (1, 2, 3, 0):
        for r in range(16):
            A('v_fma_f32 %s, %s, %s, %s' % (v(ACC + q * 16 + r), v(ACC + q * 16 + r), v(166 + (q & 1)), v(ACA + q * 16 + r)))
    G3.reduce()
    for r in range(16):
        A('v_add_f32 %s, %s, v168' % (v(ACC + r), v(ACC + r)))
    for q in range(8):
        A('v_cvt_pk_bf16_f32 %s, %s, %s' % (v(80 + q), v(ACC + 2 * q), v(ACC + 2 * q + 1)))
    A('v_lshlrev_b32 v14, 10, v162')
    A('v_lshl_add_u32 v14, %s, 5, v14' % v(VH))
    A('s_lshl_b32 s5, s%d, 16' % SS3)
    A('s_lshl_b32 s6, s%d, 7' % SD3)
    A('s_add_u32 s5, s5, s6')
    A('s_lshr_b32 s6, s28, 1')
    A('s_lshl_b32 s6, s6, 6')
    A('s_add_u32 s5, s5, s6')
    A('buffer_store_dwordx4 v[80:83], v14, %s, s5 offen' % s(SOUT, 4), 'st')
    A('buffer_store_dwordx4 v[84:87], v14, %s, s5 offen offset:16' % s(SOUT, 4), 'st')
    if CFG['STAMPS']:
        stamp(A)
        stamp(A, real=True)
        flush(A)
        A('s_lshl_b32 s5, s2, 2')
        A('s_add_u32 s5, s5, s28')
        A('s_lshl_b32 s5, s5, 8')
        A('s_add_u32 s5, s5, %d' % WS_STAMP)
        A('v_lshlrev_b32 v2, 2, v2')
        A('buffer_store_dword %s, v2, %s, s5 offen' % (v(VST), s(SWS, 4)))
    A.label('k_end')
    A('s_endpgm')

    A.label('spare')
    A.vm, A.lg = list(snap[0]), list(snap[1])
    loads[:] = snap[2]
    STAMP['n'] = snap[3]
    STAMP['lane'] = 0
    p1_steps(SPLIT, 16, {})
    stamp(A, 1)
    p1_epilogue()
    stamp(A)
    flush(A, 22)
    A.wait(vm='st2')
    emit(A, flag_store('s43'))
    SH = 33
    A('s_lshl_b32 s33, s3, 2')
    A('s_add_u32 s33, s33, s4')
    A('s_sub_u32 s33, s33, 28')
    A('v_lshlrev_b32 v7, 4, v0')
    A('v_lshlrev_b32 v9, 10, v4')
    A('v_lshl_add_u32 v9, v3, 4, v9')
    A('s_lshl_b32 s32, s33, 15')
    A('s_lshl_b32 s5, s28, 13')
    A('s_add_u32 s32, s32, s5')
    A('s_add_u32 s32, s32, %d' % WS_KVP)
    A('s_lshl_b32 s39, s28, 8')
    A('s_lshl_b32 s5, s33, 14')
    A('s_add_u32 s39, s39, s5')
    A('s_lshl_b32 s36, s28, 12')
    for q in range(4):
        A('s_add_u32 m0, s36, %d' % (q * 1024))
        A('s_add_u32 s37, s39, %d' % (q * 4096))
        A('buffer_load_dwordx4 v9, %s, s37 offen lds' % s(SWO, 4), 'wo')
    f1_addr()
    emit(A, poll_issue('s34', 'p1'))
    poll_check(A, 's34', 'p1', 'f1s')
    A('s_barrier')
    A('s_or_b32 s5, s33, s28')
    A('s_cmp_eq_u32 s5, 0')
    A('s_mov_b32 s6, %d' % WS_E)
    A('s_cselect_b32 s5, s6, %d' % OOB)
    emit(A, flag_store('s5'))
    KVR = 16
    spf = []
    if CFG['SPF']:
        A('v_lshlrev_b32 v8, 12, v2')
        A('s_sub_u32 s64, s4, 28')
        A('s_mul_i32 s64, s64, %d' % (7 * 64 * 4096))
        if CFG['MAP3'] == 0:
            A('s_lshl_b32 s5, s3, 9')
        else:
            A('s_lshr_b32 s5, s3, 1')
            A('s_lshl_b32 s5, s5, 10')
            A('s_and_b32 s6, s3, 1')
            A('s_lshl_b32 s6, s6, 9')
            A('s_add_u32 s5, s5, s6')
        A('s_add_u32 s64, s64, s5')
        A('s_lshl_b32 s5, s28, 7')
        A('s_add_u32 s64, s64, s5')
        for r in range(CFG['SPF']):
            spf.append((['s_add_u32 s65, s64, %d' % (r * 64 * 4096)],
                        'buffer_load_dword v175, v8, %s, s65 offen' % s(SW2, 4), 'pf'))
    for _ in range(CFG['SPF0']):
        if spf:
            emit(A, spf.pop(0))
    A('s_lshl_b32 s34, s33, 12')
    A('s_add_u32 s34, s34, %d' % WS_F2)
    A('s_lshr_b32 s40, s43, 12')
    A('s_lshl_b32 s40, s40, 12')
    A('v_mov_b32 v1, s34')
    A('v_mov_b32 %s, s40' % v(VPA))
    A('v_cmp_gt_u32 vcc, 32, v2')
    A('v_cndmask_b32 %s, %s, v1, vcc' % (v(VPA), v(VPA)))
    A('v_lshl_add_u32 %s, %s, 7, %s' % (v(VPA), v(V31), v(VPA)))
    emit(A, poll_issue('0', 'p2'))
    poll_check(A, '0', 'p2', 'f2')
    stamp(A, 2)
    for i in range(8):
        if i == 4:
            A('s_add_u32 s32, s32, 4096')
        A('buffer_load_dwordx4 %s, v5, %s, s32 offen offset:%d sc1' % (v(KVR + 4 * i, 4), s(SWS, 4), (i % 4) * 1024), 'kv')
    for it in pp_loads():
        emit(A, it)
    A.wait(vm='kv')
    n = 8
    while n > 1:
        n //= 2
        for i in range(n):
            for r in range(4):
                A('v_add_f32 %s, %s, %s' % (v(KVR + 4 * i + r), v(KVR + 4 * i + r), v(KVR + 4 * (i + n) + r)))
    A('ds_write_b128 v7, %s offset:16384' % v(KVR, 4), 'kvw')
    A.wait(lg='kvw')
    A('s_barrier')
    for w in range(4):
        A('ds_read_b128 %s, v5 offset:%d' % (v(KVR + 4 * w, 4), 16384 + w * 1024), 'kvr')
    A.wait(lg='kvr')
    for r in range(4):
        A('v_add_f32 %s, %s, %s' % (v(KVR + r), v(KVR + r), v(KVR + 4 + r)))
        A('v_add_f32 %s, %s, %s' % (v(KVR + 8 + r), v(KVR + 8 + r), v(KVR + 12 + r)))
    for r in range(4):
        A('v_add_f32 %s, %s, %s' % (v(KVR + r), v(KVR + r), v(KVR + 8 + r)))
    A('v_cvt_pk_bf16_f32 v12, %s, %s' % (v(KVR), v(KVR + 1)))
    A('v_cvt_pk_bf16_f32 v13, %s, %s' % (v(KVR + 2), v(KVR + 3)))
    A('v_lshrrev_b32 v14, 2, v2')
    A('v_lshlrev_b32 v14, 8, v14')
    A('v_and_b32 v15, 3, v2')
    A('v_lshl_add_u32 v14, v15, 3, v14')
    A('v_add_u32 v14, s36, v14')
    A.wait(vm='wo')
    for nb in range(8):
        A('ds_read_b64_tr_b16 %s, v14 offset:%d' % (v(20 + 2 * nb, 2), nb * 32), 'wt')
    A.wait(lg='wt')
    for nb in range(8):
        A('v_mfma_f32_16x16x16_bf16 %s, v[12:13], %s, 0' % (v(40 + 4 * nb, 4), v(20 + 2 * nb, 2)))
    A('v_lshrrev_b32 v14, 1, v4')
    A('v_lshlrev_b32 v14, 10, v14')
    A('v_lshl_add_u32 v14, v3, 4, v14')
    A('v_and_b32 v15, 1, v4')
    A('v_lshl_add_u32 v14, v15, 3, v14')
    A('s_mul_i32 s5, s28, %d' % (2 * UM_TILE))
    A('s_lshl_b32 s6, s33, 11')
    A('s_add_u32 s5, s5, s6')
    A('s_add_u32 s5, s5, %d' % (WS_UM + 224 * 1024))
    A('s_add_u32 s6, s5, %d' % UM_TILE)
    for nb in range(8):
        A('v_cvt_pk_bf16_f32 %s, %s, %s' % (v(20 + 2 * nb), v(40 + 4 * nb), v(41 + 4 * nb)))
        A('v_cvt_pk_bf16_f32 %s, %s, %s' % (v(21 + 2 * nb), v(42 + 4 * nb), v(43 + 4 * nb)))
        A('buffer_store_dwordx2 %s, v14, %s, %s offen offset:%d sc1'
          % (v(20 + 2 * nb, 2), s(SWS, 4), s(5 + nb // 4), (nb % 4) * 256), 'st')
    A.wait(vm='pz')
    ppL, ppS = pp_compute()
    for ins in ppL:
        A(ins)
    for it in ppS:
        emit(A, it)
    A.wait_all()
    emit(A, flag_store('s40'))
    A('s_barrier')
    stamp(A, 2)
    A('s_lshl_b32 s5, s33, 7')
    A('s_add_u32 s5, s5, %d' % WS_F3)
    A('s_cmp_eq_u32 s28, 0')
    A('s_cselect_b32 s5, s5, %d' % OOB)
    emit(A, flag_store('s5'))
    for it in spf:
        emit(A, it)
    stamp(A, 2)
    for it in early3:
        emit(A, it)
    f3_addr()
    emit(A, poll_issue('s34', 'p3'))
    poll_check(A, 's34', 'p3', 'f3s')
    stamp(A, 2)
    for it in apart_items():
        emit(A, it)
    A.wait_all()
    stamp(A)
    flush(A, 38)
    A('s_branch join')
    emit_slow(A)
    A.label('code_end')
    return dict(vgpr=244, agpr=256, lds=0x10000 + CFG['DW3'] * 16384)


def build(out_path):
    A = Asm()
    del SLOW[:]
    STAMP['n'] = 0
    STAMP['lane'] = 0
    k = gen(A)
    lds = max(k['lds'], 4 * 32768 + 8 * 1088)
    ref = open(REF).read().split('\n')
    head = [l for l in ref if l.startswith(';') and '@launch' not in l and 'Override launch' not in l
            and 'grid=ceil' not in l]
    txt = '\n'.join(head) + '\n'
    txt += '; @launch grid=(256,1,1) block=(256,1,1) lds=%d\n' % lds
    txt += '.amdgcn_target "amdgcn-amd-amdhsa--gfx950"\n.text\n'
    txt += '.set CODE_SPAN, code_end - %s - 2048\n' % KN
    txt += A.text()
    txt += '.section .rodata,"a"\n'
    acc_off = (k['vgpr'] + 3) // 4 * 4
    txt += '''.p2align 6
.amdhsa_kernel %s
  .amdhsa_next_free_vgpr %d
  .amdhsa_next_free_sgpr 102
  .amdhsa_accum_offset %d
  .amdhsa_group_segment_fixed_size 0
  .amdhsa_kernarg_size 96
  .amdhsa_user_sgpr_count 2
  .amdhsa_user_sgpr_kernarg_segment_ptr 1
  .amdhsa_system_sgpr_workgroup_id_x 1
.end_amdhsa_kernel
''' % (KN, acc_off + k['agpr'], acc_off)
    open(out_path, 'w').write(txt)


if __name__ == '__main__':
    out = sys.argv[1] if len(sys.argv) > 1 else 'cdna_kernels/%s.s' % NAME
    for kv in sys.argv[2:]:
        k_, val = kv.split('=')
        assert k_ in CFG, k_
        CFG[k_] = int(val)
    build(out)
```

```python
import sys
src=open(sys.argv[1]).read()
KN='gated_mix__linear_attn_block__mixer_token_mlp__prompt_kernel'
def mk(name, mode, label=None):
    t=src.replace(KN+':\n', KN+':\n    s_memrealtime s[82:83]\n    s_memtime s[84:85]\n',1)
    if label:
        t=t.replace('\n'+label+':\n', '\n'+label+':\n    s_memrealtime s[86:87]\n',1)
    if mode==0: tgt='s_mov_b32 s90, 6000'
    elif mode==1: tgt='s_sub_u32 s90, s88, s82\n    s_mul_i32 s90, s90, 4\n    s_add_u32 s90, s90, 6000'
    elif mode==2: tgt='s_sub_u32 s90, s92, s84\n    s_lshr_b32 s90, s90, 2\n    s_add_u32 s90, s90, 6000'
    else: tgt='s_sub_u32 s90, s86, s82\n    s_mul_i32 s90, s90, 4\n    s_add_u32 s90, s90, 6000'
    spin='''    s_or_b32 s5, s2, s28
    s_cmp_lg_u32 s5, 0
    s_cbranch_scc1 k_end
    s_waitcnt vmcnt(0)
    s_memrealtime s[88:89]
    s_memtime s[92:93]
    s_waitcnt lgkmcnt(0)
    %s
    s_min_u32 s90, s90, 30000
    s_mov_b32 s91, 0
spin_l:
    s_memrealtime s[88:89]
    s_waitcnt lgkmcnt(0)
    s_sub_u32 s88, s88, s82
    s_add_u32 s91, s91, 1
    s_cmp_ge_u32 s91, 100000
    s_cbranch_scc1 k_end
    s_cmp_lt_u32 s88, s90
    s_cbranch_scc1 spin_l
k_end:
''' % tgt
    t=t.replace('k_end:\n', spin, 1)
    open(name,'w').write(t)
mk('sq0.s',0); mk('sq1.s',1); mk('sq2.s',2); mk('sq3.s',3,'g2'); mk('sq4.s',3,'join')
```
